```python
import torch

def _softmax(x, axis=-1):
    return torch.softmax(x, dim=axis)
def _gelu(x):
    return torch.nn.functional.gelu(x, approximate="tanh")
def _silu(x):
    return torch.nn.functional.silu(x)
def _sigmoid(x):
    return torch.sigmoid(x)
def _layernorm(x, axis=-1, eps=1e-5):
    m = x.mean(dim=axis, keepdim=True)
    v = x.var(dim=axis, keepdim=True, unbiased=False)
    return (x - m) / torch.sqrt(v + eps)
def _scatter_add(tgt, idx, src, axis=0):
    return tgt.clone().index_add_(axis, idx, src)
def _segment_sum(src, seg, n):
    out = torch.zeros((n,) + src.shape[1:], dtype=src.dtype)
    return out.index_add_(0, seg, src)
def _pad(x, pw):
    flat = tuple(v for pair in reversed(pw) for v in pair)
    return torch.nn.functional.pad(x, flat)

kernel_name = 'sequential_preLN__spectral_fnet__geglu_ffn__prompt'

def setup_inputs():

    _w = (lambda a: (lambda t: t.to(torch.bfloat16) if t.is_floating_point() else t)(torch.as_tensor(a)))
    def _A_setup():
        B, S, D = 1, 2048, 512
        ns = torch.arange(S)[:, None] * torch.arange(S)[None, :]
        nd = torch.arange(D)[:, None] * torch.arange(D)[None, :]
        Ws_re = torch.cos(-2.0 * torch.pi * ns / S).to(float)
        Ws_im = torch.sin(-2.0 * torch.pi * ns / S).to(float)
        Wd_re = torch.cos(-2.0 * torch.pi * nd / D).to(float)
        Wd_im = torch.sin(-2.0 * torch.pi * nd / D).to(float)
        return {
            "x": _w((lambda *s: torch.randn(*s, dtype=torch.bfloat16) * 0.05)(B, S, D)),
            "dft_seq_re": _w(Ws_re),
            "dft_seq_im": _w(Ws_im),
            "dft_hid_re": _w(Wd_re),
            "dft_hid_im": _w(Wd_im),
        }
    _A_in = _A_setup()

    def _B_setup():
        B, S, D, F = 1, 2048, 512, 1792
        return {
            "x": _w((lambda *s: torch.randn(*s, dtype=torch.bfloat16) * 0.05)(B, S, D)),
            "w_gate": _w((lambda *s: torch.randn(*s, dtype=torch.bfloat16) * 0.2)(D, F)),
            "w_up": _w((lambda *s: torch.randn(*s, dtype=torch.bfloat16) * 0.2)(D, F)),
            "w_down": _w((lambda *s: torch.randn(*s, dtype=torch.bfloat16) * 0.2)(F, D)),
        }
    _B_in = _B_setup()

    return {
        "A_x": _A_in["x"],
        "A_dft_seq_re": _A_in["dft_seq_re"],
        "A_dft_seq_im": _A_in["dft_seq_im"],
        "A_dft_hid_re": _A_in["dft_hid_re"],
        "A_dft_hid_im": _A_in["dft_hid_im"],
        "B_x": _B_in["x"],
        "B_w_gate": _B_in["w_gate"],
        "B_w_up": _B_in["w_up"],
        "B_w_down": _B_in["w_down"],
    }

def reference(A_x, A_dft_seq_re, A_dft_seq_im, A_dft_hid_re, A_dft_hid_im, B_x, B_w_gate, B_w_up, B_w_down):
    def _A_ref(x, dft_seq_re, dft_seq_im, dft_hid_re, dft_hid_im):
        a = torch.einsum("bsd,ed->bse", x, dft_hid_re)
        b = torch.einsum("bsd,ed->bse", x, dft_hid_im)
        y = torch.einsum("ts,bse->bte", dft_seq_re, a) - torch.einsum("ts,bse->bte", dft_seq_im, b)
        return y

    def _B_ref(x, w_gate, w_up, w_down):
        return (_gelu(x @ w_gate) * (x @ w_up)) @ w_down

    x = A_x
    h = x + _A_ref(_layernorm(x, axis=-1), A_dft_seq_re, A_dft_seq_im, A_dft_hid_re, A_dft_hid_im)
    h2 = h + _B_ref(_layernorm(h, axis=-1), B_w_gate, B_w_up, B_w_down)
    return h2
```

```python
import re
TRANS = ('v_exp_f32','v_log_f32','v_rcp_f32','v_rsq_f32','v_sqrt_f32','v_sin_f32','v_cos_f32')
def regs_of(tok):
    tok = tok.strip()
    neg = tok.lstrip('-')
    if neg.startswith('abs('): neg = neg[4:-1]
    if neg.startswith('|'): neg = neg.strip('|')
    m = re.fullmatch(r'([vas])(\d+)', neg)
    if m: return {(m.group(1), int(m.group(2)))}
    m = re.fullmatch(r'([vas])\[(\d+):(\d+)\]', neg)
    if m: return {(m.group(1), i) for i in range(int(m.group(2)), int(m.group(3))+1)}
    if neg == 'vcc': return {('s', 'vcc')}
    if neg == 'm0': return {('s', 'm0')}
    if neg == 'exec': return {('s','exec')}
    return set()
class Ins:
    def __init__(self, text):
        self.text = text
        t = text.split(';')[0].strip()
        self.label = t.endswith(':')
        sp = t.split(None, 1)
        self.op = sp[0] if sp else ''
        ops = []
        if len(sp) > 1:
            ops = [o.strip() for o in sp[1].split(',')]
            if ops:
                last = ops[-1].split()
                ops[-1] = last[0] if last else ''
                self.mods = last[1:]
        else: self.mods = []
        self.ops = ops
        op = self.op
        self.mfma = op.startswith('v_mfma')
        self.valu = op.startswith('v_') and not self.mfma
        self.trans = any(op.startswith(x) for x in TRANS)
        self.vmem = op.startswith(('buffer_', 'global_'))
        self.ds = op.startswith('ds_')
        self.salu = op.startswith('s_')
        self.lds_dma = self.vmem and 'lds' in self.mods
        self.dpp = any(m.startswith(('quad_perm','row_','wave_')) for m in self.mods)
        self.perml = op.startswith('v_permlane')
        R = [regs_of(o) for o in ops]
        allr = set().union(*R) if R else set()
        d, u = set(), set()
        if self.label or not op: pass
        elif self.vmem:
            if 'store' in op or self.lds_dma or ('atomic' in op and 'sc0' not in self.mods): u = allr
            elif 'atomic' in op: d = R[0]; u = allr
            else: d = R[0]; u = set().union(*R[1:])
        elif self.ds:
            if op.startswith(('ds_write',)): u = allr
            else: d = R[0]; u = set().union(*R[1:])
        elif self.perml and 'swap' in op: d = allr; u = allr
        elif op.startswith('v_cmp'): d = R[0]; u = set().union(*R[1:])
        elif op.startswith(('v_add_co','v_addc_co','v_sub_co')): d = R[0]|R[1]; u = set().union(*R[2:])
        elif op.startswith(('s_cmp','s_cbranch','s_branch','s_waitcnt','s_barrier','s_nop','s_endpgm','s_setprio','s_sleep')): u = allr
        else:
            d = R[0] if R else set(); u = set().union(*R[1:]) if len(R) > 1 else set()
            if op.startswith(('v_fmac','v_dot2c','v_mac','v_pk_fmac')) or self.dpp: u = u | d
        self.d, self.u = d, u
        self.passes = 0
        if self.mfma:
            self.passes = 8 if '32x32' in op else 4
            self.srcC = R[3]; self.srcAB = R[1] | R[2]
        self.wide_store = self.vmem and 'store' in op and ('x4' in op or 'x3' in op)
        self.states = 1
        if op == 's_nop': self.states = int(ops[0]) + 1
        if self.label or not op: self.states = 0
def need(p, c):
    n = 0
    vd = {r for r in p.d if r[0] in 'va'}
    sd = {r for r in p.d if r[0] == 's'}
    if p.valu:
        if c.mfma and vd & c.u: n = max(n, 2)
        if c.valu and c.dpp and vd & c.u: n = max(n, 2)
        if c.perml and vd & c.u: n = max(n, 2)
        if c.op.startswith(('v_readfirstlane','v_readlane')) and vd & c.u: n = max(n, 1)
        if p.trans and c.valu and not c.trans and vd & c.u: n = max(n, 1)
        if sd:
            if c.vmem and sd & c.u: n = max(n, 5)
            if c.valu and sd & c.u: n = max(n, 2)
            if c.valu and ('s','vcc') in sd and c.op.startswith('v_cndmask') : n = max(n, 2)
            if c.salu and sd & c.u: n = max(n, 1)
        if any(m.startswith(('op_sel','dst_sel')) for m in p.mods) and c.valu and vd & (c.u|c.d): n = max(n,1)
    if p.mfma:
        big = {4: 8, 8: 12}[p.passes]
        if c.mfma:
            if c.srcAB & p.d: n = max(n, big)
            if c.srcC & p.d and not (c.srcC == p.d and c.passes == p.passes): n = max(n, big-2)
            if c.d & p.d and not (c.srcC == p.d): n = max(n, big-2)
        elif (c.valu or c.vmem or c.ds) and (p.d & (c.u | c.d)): n = max(n, big)
        if c.valu and (p.srcC & c.d): n = max(n, {4: 3, 8: 7}[p.passes])
    if p.wide_store and (c.valu or c.mfma) and (p.u & c.d & {r for r in p.u if r[0] in 'va'}): n = max(n, 2)
    if p.salu and ('s','m0') in p.d and c.lds_dma: n = max(n, 1)
    if p.op.startswith('v_dot2') and (c.valu or c.mfma or c.vmem or c.ds) and vd & (c.u|c.d):
        if not (c.op == p.op and len(c.ops) > 3 and regs_of(c.ops[3]) & vd and not ((regs_of(c.ops[1])|regs_of(c.ops[2])) & vd)): n = max(n, 3)
    return n
class Asm:
    def __init__(self): self.L = []
    def __call__(self, s, *a):
        for line in s.split('\n'):
            line = line.strip()
            if line: self.L.append(line)
    def fix(self):
        out = []; hist = []
        for t in self.L:
            c = Ins(t)
            if c.op and not c.label:
                dist = 0; req = 0
                for p in reversed(hist):
                    if dist >= 20: break
                    k = need(p, c) - dist
                    if k > req: req = k
                    dist += p.states
                while req > 0:
                    k = min(req, 16); nop = Ins('s_nop %d' % (k-1)); out.append(nop.text); hist.append(nop); req -= k
            out.append(t); hist.append(c)
        return out
def v(a, n=1): return 'v%d' % a if n == 1 else 'v[%d:%d]' % (a, a+n-1)
def s(a, n=1): return 's%d' % a if n == 1 else 's[%d:%d]' % (a, a+n-1)
def acc(a, n=1): return 'a%d' % a if n == 1 else 'a[%d:%d]' % (a, a+n-1)
import struct
def f2u(x): return '0x%08x' % struct.unpack('<I', struct.pack('<f', x))[0]
def kd(name, vgpr, accum, sgpr=96):
    return f""".section .rodata,"a"
.p2align 6
.amdhsa_kernel {name}
  .amdhsa_next_free_vgpr {vgpr}
  .amdhsa_next_free_sgpr {sgpr}
  .amdhsa_accum_offset {accum}
  .amdhsa_group_segment_fixed_size 0
  .amdhsa_kernarg_size 96
  .amdhsa_user_sgpr_count 2
  .amdhsa_user_sgpr_kernarg_segment_ptr 1
  .amdhsa_system_sgpr_workgroup_id_x 1
  .amdhsa_float_denorm_mode_32 3
.end_amdhsa_kernel
"""
```

```python
import sys
from asmlib import *
NAME='sequential_preLN__spectral_fnet__geglu_ffn__prompt'
WS_Z=0; WS_HN=2<<20; WS_H=4<<20; WS_G=6<<20; WS_SIZE=268435456
def srd(a, d, argoff, nbytes, tmp=None):
    a(f's_load_dwordx2 {s(d,2)}, s[0:1], {argoff}')
    return lambda: a(f's_mov_b32 {s(d+2)}, {nbytes}\ns_mov_b32 {s(d+3)}, 0x20000')
def head(a, name):
    a(f's_cmp_ge_u32 s2, 256\ns_cbranch_scc1 L_{name}_end')
def lanewave(a, vl, sw):
    a(f'v_lshrrev_b32 v1, 6, v0\nv_and_b32 {v(vl)}, 63, v0\nv_readfirstlane_b32 {s(sw)}, v1')
def k1of(a, sdst, spair, m, st):
    a(f's_sub_u32 {s(sdst)}, 32, {s(spair)}\ns_cmp_eq_u32 {s(spair)}, 0\ns_cselect_b32 {s(sdst)}, 16, {s(sdst)}')

def gen_k1():
    a=Asm(); n='p1'; head(a,n)
    fx=srd(a,8,0,2097152); fw=srd(a,12,88,WS_SIZE)
    SW,SQ,SS2,SWQ,SSG,ST=16,17,18,19,20,21
    VL,VC,VH=2,3,4
    lanewave(a,VL,SW)
    a(f's_lshr_b32 s3, s2, 3\ns_and_b32 {s(SQ)}, s3, 3\ns_lshr_b32 s3, s3, 2\ns_lshl_b32 s3, s3, 3\ns_and_b32 s4, s2, 7\ns_add_u32 {s(SS2)}, s3, s4')
    a(f'v_and_b32 {v(VC)}, 15, {v(VL)}\nv_lshrrev_b32 {v(VH)}, 4, {v(VL)}')
    a('s_waitcnt lgkmcnt(0)'); fx(); fw()
    a(f's_lshl_b32 s3, {s(SW)}, 3')
    a(f's_lshl_b32 s4, s3, 16\ns_lshl_b32 s5, {s(SS2)}, 10\ns_add_u32 s4, s4, s5')
    a(f's_lshl_b32 s5, s3, 10')
    a(f's_and_b32 s6, s3, 15\ns_lshl_b32 s6, s6, 4')
    a(f'v_lshlrev_b32 v5, 4, {v(VL)}\nv_xor_b32 v5, s6, v5')
    for i in range(8):
        a(f'v_xor_b32 v6, {i*16}, v5' if i*16<=64 else f'v_xor_b32 v6, {hex(i*16)}, v5')
        a(f's_mov_b32 m0, s5\ns_add_u32 s5, s5, 1024')
        a(f'buffer_load_dwordx4 v6, s[8:11], s4 offen lds')
        a(f's_add_u32 s4, s4, 65536')
    a(f's_lshl_b32 {s(SWQ)}, {s(SQ)}, 2\ns_add_u32 {s(SWQ)}, {s(SWQ)}, {s(SW)}')
    a(f's_lshl_b32 s3, {s(SWQ)}, 5\ns_cmp_lt_u32 {s(SQ)}, 2\ns_cselect_b32 s4, 1, -254\ns_cselect_b32 {s(SSG)}, -1.0, 1.0\ns_add_u32 s3, s3, s4')
    VE,VB=5,6
    a(f'v_lshl_add_u32 {v(VE)}, {v(VC)}, 1, s3\nv_cvt_f32_u32 {v(VE)}, {v(VE)}\nv_mul_f32 {v(VE)}, {f2u(1/512)}, {v(VE)}')
    a(f'v_lshlrev_b32 {v(VB)}, 3, {v(VH)}\nv_cvt_f32_u32 {v(VB)}, {v(VB)}\nv_mul_f32 {v(VB)}, {v(VE)}, {v(VB)}')
    TC,TS=16,48; TMP=8
    for st in range(8):
        for jp in range(4):
            for k in range(2):
                c=32*st+2*jp+k
                if c==0: a(f'v_mov_b32 {v(TMP+k)}, {v(VB)}')
                else: a(f'v_fmamk_f32 {v(TMP+k)}, {v(VE)}, {f2u(float(c))}, {v(VB)}')
            a(f'v_cos_f32 {v(TMP+2)}, {v(TMP)}\nv_cos_f32 {v(TMP+3)}, {v(TMP+1)}')
            a(f'v_sin_f32 {v(TMP+4)}, -{v(TMP)}\nv_sin_f32 {v(TMP+5)}, -{v(TMP+1)}')
            a(f'v_cvt_pk_bf16_f32 {v(TC+4*st+jp)}, {v(TMP+2)}, {v(TMP+3)}')
            a(f'v_cvt_pk_bf16_f32 {v(TS+4*st+jp)}, {v(TMP+4)}, {v(TMP+5)}')
    MC,MS,MN=80,88,96
    for T in range(2):
        a(f'v_lshrrev_b32 v5, 1, {v(VC)}\nv_add_u32 v5, {8*T}, v5')
        a(f'v_sub_u32 v6, 32, v5\nv_cmp_eq_u32 vcc, 0, v5\nv_cndmask_b32 v6, v6, 16, vcc')
        a(f'v_and_b32 v7, 1, {v(VC)}\nv_cmp_eq_u32 vcc, 1, v7\nv_cndmask_b32 v5, v5, v6, vcc')
        a(f'v_cvt_f32_u32 v5, v5\nv_mul_f32 v5, {f2u(1/2048)}, v5')
        a(f'v_lshlrev_b32 v6, 8, {v(VH)}\nv_add_u32 v6, {s(SS2)}, v6\nv_cvt_f32_u32 v6, v6\nv_mul_f32 v6, v5, v6')
        for jp in range(4):
            for k in range(2):
                j=2*jp+k; c=64*(16*(j>>2)+(j&3))
                if c==0: a(f'v_mov_b32 {v(TMP+k)}, v6')
                else: a(f'v_fmamk_f32 {v(TMP+k)}, v5, {f2u(float(c))}, v6')
            a(f'v_cos_f32 {v(TMP+2)}, {v(TMP)}\nv_cos_f32 {v(TMP+3)}, {v(TMP+1)}')
            a(f'v_sin_f32 {v(TMP+4)}, {v(TMP)}\nv_sin_f32 {v(TMP+5)}, {v(TMP+1)}')
            a(f'v_cvt_pk_bf16_f32 {v(MC+4*T+jp)}, {v(TMP+2)}, {v(TMP+3)}')
            a(f'v_cvt_pk_bf16_f32 {v(MS+4*T+jp)}, {v(TMP+4)}, {v(TMP+5)}')
            a(f'v_xor_b32 {v(MN+4*T+jp)}, 0x80008000, {v(MS+4*T+jp)}')
    AX=104
    for b in range(4):
        a(f'v_add_u32 v5, {4*b}, {v(VH)}\nv_xor_b32 v5, v5, {v(VC)}\nv_lshlrev_b32 v5, 4, v5\nv_lshl_add_u32 {v(AX+b)}, {v(VC)}, 10, v5')
    AS=108
    a(f'v_lshrrev_b32 v5, 3, {v(VL)}\ns_lshl_b32 s3, {s(SW)}, 3\nv_add_u32 v5, s3, v5')
    a(f'v_lshlrev_b32 v110, 2, v5\nv_add_u32 v110, 0x8000, v110')
    a(f'v_and_b32 v6, 15, v5\nv_and_b32 v7, 7, {v(VL)}\nv_xor_b32 v6, v6, v7\nv_lshlrev_b32 v6, 4, v6\nv_lshl_add_u32 {v(AS)}, v5, 10, v6\nv_xor_b32 {v(AS+1)}, 0x80, {v(AS)}')
    a(f'v_lshlrev_b32 v111, 4, {v(VH)}\nv_add_u32 v111, 0x8000, v111')
    a(f'v_lshrrev_b32 v5, 1, {v(VC)}\nv_lshlrev_b32 v5, 17, v5\nv_and_b32 v6, 1, {v(VC)}\nv_lshl_add_u32 v5, v6, 6, v5\nv_lshl_add_u32 v112, {v(VH)}, 4, v5')
    a(f's_lshl_b32 s3, {s(SS2)}, 11\ns_lshl_b32 s4, {s(SWQ)}, 7\ns_add_u32 {s(ST)}, s3, s4\ns_add_u32 {s(ST+1)}, {s(ST)}, {8<<17}')
    a(f'v_mov_b32 v113, 0x3f803f80')
    a('s_waitcnt vmcnt(0)\ns_barrier')
    XS=116
    XF=148; ACC=180
    for i in range(8): a(f'ds_read_b128 {v(XS+4*i,4)}, {v(AS+(i&1))} offset:{(i>>1)*256}')
    reads=[(ks,T) for ks in range(16) for T in range(2)]
    def rd(n):
        ks,T=reads[n]; a(f'ds_read_b128 {v(XF+4*(n%8),4)}, {v(AX+(ks&3))} offset:{T*16384+(ks>>2)*256}')
    for n in range(6): rd(n)
    stats=[]
    for i in range(32):
        stats.append(f'v_dot2_f32_bf16 v{5+(i&1)}, {v(XS+i)}, v113, '+('0' if i<2 else f'v{5+(i&1)}'))
        stats.append(f'v_dot2_f32_bf16 v{7+(i&1)}, {v(XS+i)}, {v(XS+i)}, '+('0' if i<2 else f'v{7+(i&1)}'))
    dp='row_mask:0xf bank_mask:0xf'
    stats+=['v_add_f32 v5, v5, v6','v_add_f32 v7, v7, v8']
    for m in ('quad_perm:[1,0,3,2]','quad_perm:[2,3,0,1]','row_half_mirror'):
        stats+=[f'v_add_f32 v5, v5, v5 {m} {dp}', f'v_add_f32 v7, v7, v7 {m} {dp}']
    stats+=[f'v_mul_f32 v5, {f2u(1/512)}, v5', f'v_mul_f32 v7, {f2u(1/512)}, v7','v_fma_f32 v7, -v5, v5, v7',f'v_add_f32 v7, {f2u(1e-5)}, v7','v_max_f32 v7, v7, v7','v_rsq_f32 v7, v7','s_nop 0','ds_write_b32 v110, v7']
    si=0
    for n in range(32):
        ks,T=reads[n]
        if n+6<32: rd(n+6)
        outst=min(31,n+6)-n
        if si>=len(stats): a('s_waitcnt lgkmcnt(%d)'%outst)
        else: a('s_waitcnt lgkmcnt(%d)'%outst)
        half=ks>>3; st=ks&7
        for c,TB in ((0,TC),(1,TS)):
            A=ACC+half*16+T*8+c*4
            src='0' if st==0 else v(A,4)
            a(f'v_mfma_f32_16x16x32_bf16 {v(A,4)}, {v(XF+4*(n%8),4)}, {v(TB+4*st,4)}, {src}')
            for _ in range(2):
                if si<len(stats)-1: a(stats[si]); si+=1
    a(stats[-1])
    a('s_waitcnt lgkmcnt(0)\ns_barrier')
    RR=XS
    a(f'ds_read_b128 {v(RR,4)}, v111\nds_read_b128 {v(RR+4,4)}, v111 offset:64')
    for T in range(2):
        for c in range(2):
            for r in range(4):
                A=ACC+T*8+c*4+r
                a(f'v_fma_f32 {v(A)}, {s(SSG)}, {v(A+16)}, {v(A)}')
    a('s_waitcnt lgkmcnt(0)')
    FR=XF
    for c in range(2):
        for T in range(2):
            A=ACC+T*8+c*4
            for r in range(4): a(f'v_mul_f32 {v(A+r)}, {v(RR+4*T+r)}, {v(A+r)}')
            for jp in range(2): a(f'v_cvt_pk_bf16_f32 {v(FR+4*c+2*T+jp)}, {v(A+2*jp)}, {v(A+2*jp+1)}')
    Z=ACC+16
    for T in range(2):
        a(f'v_mfma_f32_16x16x32_bf16 {v(Z+8*T,4)}, {v(FR,4)}, {v(MC+4*T,4)}, 0')
        a(f'v_mfma_f32_16x16x32_bf16 {v(Z+8*T+4,4)}, {v(FR+4,4)}, {v(MC+4*T,4)}, 0')
    for T in range(2):
        a(f'v_mfma_f32_16x16x32_bf16 {v(Z+8*T,4)}, {v(FR+4,4)}, {v(MS+4*T,4)}, {v(Z+8*T,4)}')
        a(f'v_mfma_f32_16x16x32_bf16 {v(Z+8*T+4,4)}, {v(FR,4)}, {v(MN+4*T,4)}, {v(Z+8*T+4,4)}')
    for T in range(2):
        for k in range(4): a(f'v_cvt_pk_bf16_f32 {v(ACC+4*T+k)}, {v(Z+8*T+2*k)}, {v(Z+8*T+2*k+1)}')
        a(f'buffer_store_dwordx4 {v(ACC+4*T,4)}, v112, s[12:15], {s(ST+T)} offen')
    a(f'L_p1_end:\ns_endpgm')
    return 'p1', a, 212, 212, 33024

def gen_k2():
    a=Asm(); n='p2'; head(a,n)
    fx=srd(a,8,0,2097152); fw=srd(a,12,88,WS_SIZE)
    SW,SP,SJ,SK1B=16,17,18,19
    VL,VC,VH=2,3,4
    lanewave(a,VL,SW)
    a(f's_and_b32 s3, s2, 15\ns_mov_b32 {s(SP)}, s3\ns_lshr_b32 {s(SJ)}, s2, 4')
    a(f'v_and_b32 {v(VC)}, 15, {v(VL)}\nv_lshrrev_b32 {v(VH)}, 4, {v(VL)}')
    k1of(a,SK1B,SP,1,0)
    a(f'v_bfe_u32 v5, {v(VL)}, 2, 3\nv_lshlrev_b32 v5, 11, v5\nv_lshrrev_b32 v6, 5, {v(VL)}\nv_lshl_add_u32 v5, v6, 6, v5\nv_and_b32 v6, 3, {v(VL)}\nv_lshl_add_u32 v5, v6, 4, v5')
    a(f's_lshl_b32 s3, {s(SW)}, 9\ns_lshl_b32 s4, {s(SP)}, 17\ns_add_u32 s4, s4, s3\ns_lshl_b32 s5, {s(SW)}, 15')
    a(f's_cmp_ge_u32 {s(SW)}, 2\ns_cselect_b32 s6, {s(SK1B)}, {s(SP)}\ns_lshl_b32 s7, {s(SJ)}, 2\ns_and_b32 s20, {s(SW)}, 1\ns_lshl_b32 s20, s20, 1\ns_add_u32 s7, s7, s20\ns_lshl_b32 s7, s7, 5\ns_add_u32 s6, s6, s7\ns_lshl_b32 s21, s6, 10')
    VXO=7
    a(f'v_lshrrev_b32 v6, 5, {v(VL)}\nv_lshlrev_b32 v6, 15, v6\nv_and_b32 v8, 31, {v(VL)}\nv_lshl_add_u32 {v(VXO)}, v8, 4, v6')
    a('s_waitcnt lgkmcnt(0)'); fx(); fw()
    XR=12
    a(f'buffer_load_dwordx4 {v(XR,4)}, {v(VXO)}, s[8:11], s21 offen\nbuffer_load_dwordx4 {v(XR+4,4)}, {v(VXO)}, s[8:11], s21 offen offset:512')
    for sb in range(8):
        for ct in range(4):
            a(f's_add_u32 m0, s5, {sb*4096+ct*1024-ct*128}')
            if ct==0 and sb>0: a(f's_add_u32 s4, s4, 16384')
            else: a('s_nop 0')
            a(f'buffer_load_dwordx4 v5, s[12:15], s4 offen offset:{ct*128} lds')
    AM=20
    a(f'v_and_b32 v8, 3, {v(VC)}\ns_lshl_b32 s3, {s(SJ)}, 2\nv_add_u32 v8, s3, v8')
    a(f'v_and_b32 v9, 1, {v(VH)}\nv_cvt_f32_u32 v9, v9\nv_mul_f32 v9, {f2u(-0.25)}, v9\nv_sub_f32 v10, {f2u(-0.25)}, v9')
    a(f'v_lshlrev_b32 v11, 2, {v(VH)}\nv_cvt_f32_u32 v11, v11')
    T0=52
    for m in range(2):
        if m==0: a(f's_cmp_eq_u32 {s(SP)}, 0\ns_cselect_b32 s3, 64, 63')
        else: a('s_mov_b32 s3, 63')
        a(f'v_sub_u32 {v(T0)}, s3, v8\nv_and_b32 {v(T0+1)}, 4, {v(VC)}\nv_cmp_eq_u32 vcc, 0, {v(T0+1)}\nv_cndmask_b32 {v(T0)}, {v(T0)}, v8, vcc')
        a(f'v_cvt_f32_u32 {v(T0)}, {v(T0)}\nv_mul_f32 {v(T0)}, {f2u(1/64)}, {v(T0)}')
        a(f'v_fma_f32 {v(T0+1)}, {v(T0)}, v11, v9\nv_fma_f32 {v(T0+2)}, {v(T0)}, v11, v10')
        for st in range(4):
            for jp in range(4):
                for k in range(2):
                    jj=2*jp+k; c=16*st+(jj&3); b=T0+1+(jj>>2)
                    if c==0: a(f'v_mov_b32 {v(T0+3+k)}, {v(b)}')
                    else: a(f'v_fmamk_f32 {v(T0+3+k)}, {v(T0)}, {f2u(float(c))}, {v(b)}')
                a(f'v_cos_f32 {v(T0+5)}, {v(T0+3)}\nv_cos_f32 {v(T0+6)}, {v(T0+4)}')
                a(f'v_cvt_pk_bf16_f32 {v(AM+16*m+4*st+jp)}, {v(T0+5)}, {v(T0+6)}')
    a(f'v_lshrrev_b32 v52, 1, {v(VH)}\nv_lshlrev_b32 v52, 12, v52\nv_and_b32 v53, 1, {v(VH)}\nv_lshl_add_u32 v52, v53, 8, v52\nv_lshl_add_u32 v52, v53, 3, v52')
    a(f'v_bfe_u32 v53, {v(VL)}, 2, 2\nv_lshl_add_u32 v52, v53, 6, v52\nv_and_b32 v53, 3, {v(VL)}\nv_lshl_add_u32 v52, v53, 4, v52\nv_add_u32 v60, s5, v52\nv_xor_b32 v61, 8, v60')
    YB=131072; YS=2048
    a(f's_lshl_b32 s3, {s(SW)}, 7\ns_cmp_lt_u32 {s(SW)}, 2\ns_cselect_b32 s4, 1, -254\ns_add_u32 s3, s3, s4')
    a(f'v_lshl_add_u32 v52, {v(VC)}, 1, s3\nv_sub_u32 v53, 0x200, v52\nv_cmp_eq_u32 vcc, 0, {v(VH)}\nv_cndmask_b32 v52, v53, v52, vcc\nv_lshlrev_b32 v52, 2, v52')
    a(f'v_mov_b32 v53, 0x80\nv_mov_b32 v54, 0xffffff80\nv_cndmask_b32 v53, v54, v53, vcc')
    a(f's_cmp_eq_u32 {s(SP)}, 0\ns_cselect_b32 s3, 0, {4*YS}')
    a(f'v_mov_b32 v54, s3\nv_cndmask_b32 v54, v54, 0, vcc\nv_add_u32 v52, {YB}, v52')
    for m in range(2):
        a(f'v_xor_b32 v55, {hex(m*4*YS)}, v54\nv_add_u32 {v(62+4*m)}, v55, v52')
        for ct in range(1,4): a(f'v_add_u32 {v(62+4*m+ct)}, v53, {v(62+4*m+ct-1)}')
    a(f'v_and_b32 v52, 7, {v(VL)}\nv_lshlrev_b32 v52, 11, v52\nv_add_u32 v52, {YB}, v52\nv_mov_b32 v53, 0\nds_write_b32 v52, v53')
    ACC=72; BF=104
    for st in range(4):
        a(f's_waitcnt vmcnt({24-8*st})')
        for m in range(2):
            for ct in range(4):
                b=BF+4*(4*m+ct); o=st*8192+ct*1024+m*512
                a(f'ds_read_b64_tr_b16 {v(b,2)}, v60 offset:{o}\nds_read_b64_tr_b16 {v(b+2,2)}, v61 offset:{o}')
        for i in range(8):
            m,ct=i>>2,i&3
            a(f's_waitcnt lgkmcnt({14-2*i})')
            A=ACC+4*i
            a(f'v_mfma_f32_16x16x32_bf16 {v(A,4)}, {v(AM+16*m+4*st,4)}, {v(BF+4*i,4)}, '+('0' if st==0 else v(A,4)))
    a('s_mov_b64 exec, 0xffffffff')
    for i in range(8):
        for r in range(4): a(f'ds_write_b32 {v(62+i)}, {v(ACC+4*i+r)} offset:{r*YS}')
    a('s_mov_b64 exec, -1')
    a(f's_lshl_b32 s3, {s(SW)}, 12\ns_add_u32 s3, s3, {YB}\nv_lshrrev_b32 v52, 5, {v(VL)}\nv_lshlrev_b32 v52, 11, v52\nv_and_b32 v53, 31, {v(VL)}\nv_lshl_add_u32 v52, v53, 5, v52\nv_add_u32 v52, s3, v52')
    a(f'v_lshrrev_b32 v54, 1, v53\nv_lshlrev_b32 v54, 10, v54\nv_and_b32 v55, 1, v53\nv_lshl_add_u32 v54, v55, 9, v54\nv_lshrrev_b32 v55, 5, {v(VL)}\nv_lshl_add_u32 v54, v55, 4, v54')
    a(f's_lshl_b32 s3, {s(SP)}, 2\ns_lshr_b32 s4, {s(SJ)}, 2\ns_add_u32 s3, s3, s4\ns_lshl_b32 s3, s3, 15\ns_and_b32 s4, {s(SJ)}, 3\ns_lshl_b32 s4, s4, 7\ns_add_u32 s3, s3, s4\ns_lshl_b32 s4, {s(SW)}, 5\ns_add_u32 s3, s3, s4\ns_add_u32 s22, s3, {WS_HN}\ns_add_u32 s23, s22, 16384\ns_add_u32 s24, s21, {WS_H}')
    a('s_waitcnt lgkmcnt(0)\ns_barrier')
    Y=72
    for k in range(4): a(f'ds_read_b128 {v(Y+4*k,4)}, v52 offset:{(k>>1)*1024+(k&1)*16}')
    X=88
    for k in range(8):
        a(f'v_lshlrev_b32 {v(X+2*k)}, 16, {v(XR+k)}\nv_and_b32 {v(X+2*k+1)}, 0xffff0000, {v(XR+k)}')
    a('s_waitcnt lgkmcnt(0)')
    for k in range(16): a(f'v_add_f32 {v(Y+k)}, {v(Y+k)}, {v(X+k)}')
    for k in range(8): a(f'v_cvt_pk_bf16_f32 {v(XR+k)}, {v(Y+2*k)}, {v(Y+2*k+1)}')
    a(f'buffer_store_dwordx4 {v(XR,4)}, {v(VXO)}, s[12:15], s24 offen\nbuffer_store_dwordx4 {v(XR+4,4)}, {v(VXO)}, s[12:15], s24 offen offset:512')
    for k in range(8):
        a(f'v_lshlrev_b32 {v(X+2*k)}, 16, {v(XR+k)}\nv_and_b32 {v(X+2*k+1)}, 0xffff0000, {v(XR+k)}')
    dp='row_mask:0xf bank_mask:0xf'
    def red(r,t):
        for m in ('quad_perm:[1,0,3,2]','quad_perm:[2,3,0,1]','row_half_mirror','row_mirror'):
            a(f'v_add_f32 {v(r)}, {v(r)}, {v(r)} {m} {dp}')
        a(f'v_mov_b32 {v(t)}, {v(r)}\nv_permlane16_swap_b32 {v(r)}, {v(t)}\nv_add_f32 {v(r)}, {v(r)}, {v(t)}')
    for k in range(8): a(f'v_add_f32 {v(Y+k)}, {v(X+k)}, {v(X+8+k)}')
    for k in range(4): a(f'v_add_f32 {v(Y+k)}, {v(Y+k)}, {v(Y+4+k)}')
    a(f'v_add_f32 {v(Y)}, {v(Y)}, {v(Y+2)}\nv_add_f32 {v(Y+1)}, {v(Y+1)}, {v(Y+3)}\nv_add_f32 {v(Y)}, {v(Y)}, {v(Y+1)}')
    red(Y,Y+1)
    a(f'v_mul_f32 {v(Y)}, {f2u(-1/512)}, {v(Y)}')
    for k in range(16): a(f'v_add_f32 {v(X+k)}, {v(X+k)}, {v(Y)}')
    a(f'v_mul_f32 {v(Y+2)}, {v(X)}, {v(X)}\nv_mul_f32 {v(Y+3)}, {v(X+1)}, {v(X+1)}')
    for k in range(2,16): a(f'v_fmac_f32 {v(Y+2+(k&1))}, {v(X+k)}, {v(X+k)}')
    a(f'v_add_f32 {v(Y+2)}, {v(Y+2)}, {v(Y+3)}')
    red(Y+2,Y+3)
    a(f'v_mov_b32 {v(Y+4)}, {f2u(1e-5)}\nv_fmac_f32 {v(Y+4)}, {f2u(1/512)}, {v(Y+2)}\nv_rsq_f32 {v(Y+4)}, {v(Y+4)}')
    for k in range(16): a(f'v_mul_f32 {v(X+k)}, {v(X+k)}, {v(Y+4)}')
    for k in range(8): a(f'v_cvt_pk_bf16_f32 {v(Y+8+k)}, {v(X+2*k)}, {v(X+2*k+1)}')
    a(f'buffer_store_dwordx4 {v(Y+8,4)}, v54, s[12:15], s22 offen\nbuffer_store_dwordx4 {v(Y+12,4)}, v54, s[12:15], s23 offen')
    a(f'L_p2_end:\ns_endpgm')
    return 'p2', a, 136, 136, 147456

C1=-2.302208198; C2=C1*0.044715
def gelu_ops(G,U,T,SC1,SC2):
    return [f'v_mul_f32 {v(T)}, {v(G)}, {v(G)}', f'v_fma_f32 {v(T)}, {v(T)}, {s(SC2)}, {v(SC1)}', f'v_mul_f32 {v(T)}, {v(T)}, {v(G)}',
            f'v_exp_f32 {v(T)}, {v(T)}', f'v_mul_f32 {v(G)}, {v(G)}, {v(U)}', f'v_add_f32 {v(T)}, 1.0, {v(T)}', f'v_rcp_f32 {v(T)}, {v(T)}', None, f'v_mul_f32 {v(G)}, {v(G)}, {v(T)}']
def gen_k3():
    a=Asm(); n='g1'; head(a,n)
    a('s_load_dwordx4 s[4:7], s[0:1], 48'); fw=srd(a,12,88,WS_SIZE)
    SW,SP,SNS,SWO,SHO,SM0=16,17,18,19,20,21
    VL=2
    lanewave(a,VL,SW)
    a(f's_and_b32 s3, s2, 1\ns_lshl_b32 s3, s3, 3\ns_bfe_u32 s22, s2, {hex(3|(3<<16))}\ns_add_u32 {s(SP)}, s3, s22')
    a(f's_bfe_u32 s3, s2, {hex(1|(2<<16))}\ns_lshl_b32 s3, s3, 2\ns_lshr_b32 s22, s2, 6\ns_add_u32 {s(SNS)}, s3, s22')
    VD=4
    a(f's_and_b32 s3, {s(SW)}, 1\ns_mul_i32 s3, s3, 448\nv_add_u32 v3, s3, {v(VL)}\ns_mov_b32 s22, {(2**32+13)//14}')
    for i in range(7):
        a(f'v_mul_hi_u32 v11, v3, s22\nv_mul_u32_u24 v12, 14, v11\nv_sub_u32 v12, v3, v12\nv_mul_u32_u24 v11, 0xe00, v11\nv_lshl_add_u32 {v(VD+i)}, v12, 4, v11')
        if i<6: a('v_add_u32 v3, 64, v3')
    STG=28928; UPO=14336+128
    a(f's_mul_i32 {s(SWO)}, {s(SNS)}, 224')
    a(f's_lshl_b32 s3, {s(SP)}, 2\ns_add_u32 s3, s3, {s(SW)}\ns_lshl_b32 {s(SHO)}, s3, 15\ns_add_u32 {s(SHO)}, {s(SHO)}, {WS_HN}')
    a(f's_mul_i32 s23, s3, 112\ns_mul_i32 s22, {s(SNS)}, 7\ns_add_u32 s23, s23, s22\ns_lshl_b32 s23, s23, 10\ns_add_u32 s23, s23, {WS_G}\ns_add_u32 s24, s23, 4096')
    a(f's_and_b32 s3, {s(SW)}, 1\ns_mul_i32 s3, s3, 7168\ns_cmp_ge_u32 {s(SW)}, 2\ns_cselect_b32 s22, {UPO}, 0\ns_add_u32 {s(SM0)}, s3, s22')
    a(f'v_lshlrev_b32 v3, 4, {v(VL)}')
    a('s_waitcnt lgkmcnt(0)'); fw()
    a(f's_cmp_ge_u32 {s(SW)}, 2\ns_cselect_b32 s8, s6, s4\ns_cselect_b32 s9, s7, s5\ns_mov_b32 s10, 1835008\ns_mov_b32 s11, 0x20000')
    def group(g):
        for i in range(7):
            a(f's_add_u32 m0, {s(SM0)}, {(g%5)*STG+i*1024}')
            a('s_nop 0')
            a(f'buffer_load_dwordx4 {v(VD+i)}, s[8:11], {s(SWO)} offen lds')
        a(f's_add_u32 {s(SWO)}, {s(SWO)}, {64*3584}')
        for i in range(4):
            a(f'buffer_load_dwordx4 {acc(16*g+4*i,4)}, v3, s[12:15], {s(SHO)} offen offset:{i*1024}')
        a(f's_add_u32 {s(SHO)}, {s(SHO)}, 4096')
    for g in range(5): group(g)
    VA=12
    a(f'v_lshrrev_b32 v17, 5, {v(VL)}\nv_mul_u32_u24 v17, {8*224}, v17\nv_bfe_u32 v18, {v(VL)}, 2, 2\nv_mul_u32_u24 v18, 0xe0, v18\nv_add_u32 v17, v17, v18')
    a(f'v_bfe_u32 v18, {v(VL)}, 4, 1\nv_lshl_add_u32 v17, v18, 4, v17\nv_and_b32 v18, 1, {v(VL)}\nv_lshl_add_u32 v17, v18, 3, v17\nv_bfe_u32 v18, {v(VL)}, 1, 1\nv_mul_u32_u24 v18, {UPO}, v18\nv_add_u32 {v(VA)}, v17, v18')
    for i in range(1,5): a(f'v_add_u32 {v(VA+i)}, {STG}, {v(VA+i-1)}')
    a(f's_mov_b32 s25, {f2u(C2)}\nv_mov_b32 v17, {f2u(C1)}')
    FR=20; ACC=76
    def reads(ks):
        g=ks>>2; l=ks&3; out=[]
        for jt in range(7):
            for rd in range(2):
                out.append(f'ds_read_b64_tr_b16 {v(FR+28*(ks&1)+4*jt+2*rd,2)}, {v(VA+g%5)} offset:{l*16*224+rd*4*224+jt*32}')
        return out
    a('s_waitcnt vmcnt(44)\ns_barrier')
    for r in reads(0): a(r)
    issued=5
    for ks in range(32):
        nxt=[]
        a('s_waitcnt lgkmcnt(0)')
        if ks<31:
            if (ks&3)==3:
                g=(ks>>2)+1
                a(f's_waitcnt vmcnt({11*(issued-1-g)})\ns_barrier')
            nxt=reads(ks+1)
        dma = (ks&3)==3 and issued<8
        for jt in range(7):
            A=ACC+16*jt
            a(f'v_mfma_f32_32x32x16_bf16 {v(A,16)}, {v(FR+28*(ks&1)+4*jt,4)}, {acc(4*ks,4)}, '+('0' if ks==0 else v(A,16)))
            for r in nxt[2*jt:2*jt+2]: a(r)
            if dma and jt==1: group(issued); issued+=1
    T=FR
    for jt in range(7):
        A=ACC+16*jt
        seqs=[gelu_ops(A+8*(j>>2)+(j&3),A+8*(j>>2)+4+(j&3),T+j,17,25) for j in range(8)]
        for k in range(9):
            for q in seqs:
                if q[k]: a(q[k])
        O=T+8+4*(jt&1)
        for jp in range(4):
            g0=A+8*(jp>>1)+2*(jp&1)
            a(f'v_cvt_pk_bf16_f32 {v(O+jp)}, {v(g0)}, {v(g0+1)}')
        a(f'buffer_store_dwordx4 {v(O,4)}, v3, s[12:15], {s(23+(jt>>2))} offen offset:{(jt&3)*1024}')
    a(f'L_g1_end:\ns_endpgm')
    return 'g1', a, 188+128, 188, 5*STG

def gen_k4():
    a=Asm(); n='g2'; head(a,n)
    fd=srd(a,8,64,1835008); fw=srd(a,12,88,WS_SIZE); fo=srd(a,28,72,2097152)
    SW,SMT,SNT,SG0,SG1,SWD,SL=16,17,18,19,20,21,22
    VL=2; PD=14
    lanewave(a,VL,SW)
    a(f's_and_b32 s3, s2, 7\ns_lshl_b32 s3, s3, 2\ns_bfe_u32 s4, s2, {hex(3|(2<<16))}\ns_add_u32 {s(SMT)}, s3, s4\ns_lshr_b32 {s(SNT)}, s2, 5')
    a(f's_mul_i32 s3, {s(SMT)}, 224\ns_mul_i32 s4, {s(SW)}, 28\ns_add_u32 s3, s3, s4\ns_lshl_b32 s3, s3, 10\ns_add_u32 {s(SG0)}, s3, {WS_G}\ns_add_u32 {s(SG1)}, {s(SG0)}, {112*1024}')
    a(f's_lshl_b32 s4, s4, 14\ns_lshl_b32 s3, {s(SNT)}, 7\ns_add_u32 {s(SWD)}, s3, s4\ns_lshl_b32 {s(SL)}, {s(SW)}, 15')
    a(f'v_lshlrev_b32 v3, 4, {v(VL)}')
    a(f'v_lshrrev_b32 v5, 3, {v(VL)}\nv_bfe_u32 v6, {v(VL)}, 4, 1\nv_lshlrev_b32 v6, 2, v6\nv_and_b32 v7, 7, {v(VL)}\nv_xor_b32 v6, v6, v7\nv_lshlrev_b32 v6, 4, v6\nv_lshl_add_u32 v4, v5, 10, v6\nv_add_u32 v5, 0x2000, v4')
    a(f's_lshr_b32 s23, {s(SMT)}, 1'); k1of(a,24,23,1,0)
    a(f'v_lshrrev_b32 v6, 3, v0\ns_and_b32 s3, {s(SMT)}, 1\ns_lshl_b32 s3, s3, 6\nv_add_u32 v6, s3, v6')
    a(f'v_lshrrev_b32 v7, 3, v6\nv_lshlrev_b32 v7, 2, v7\nv_and_b32 v10, 3, v6\nv_add_u32 v7, v7, v10\nv_lshlrev_b32 v7, 5, v7')
    a(f'v_mov_b32 v10, s23\nv_mov_b32 v11, s24\nv_and_b32 v6, 4, v6\nv_cmp_eq_u32 vcc, 0, v6\nv_cndmask_b32 v10, v11, v10, vcc\nv_add_u32 v7, v7, v10\nv_lshlrev_b32 v7, 10, v7')
    a(f'v_and_b32 v6, 7, v0\nv_lshl_add_u32 v8, v6, 4, v7\nv_add_u32 v9, {16*32*1024}, v8\ns_lshl_b32 s25, {s(SNT)}, 7\ns_add_u32 s26, s25, {WS_H}')
    a('s_waitcnt lgkmcnt(0)'); fd(); fw(); fo()
    HR=12
    a(f'buffer_load_dwordx4 {v(HR,4)}, v8, s[12:15], s26 offen\nbuffer_load_dwordx4 {v(HR+4,4)}, v9, s[12:15], s26 offen')
    def loads(i):
        a(f's_add_u32 m0, {s(SL)}, {(i%16)*2048}\ns_nop 0\nbuffer_load_dwordx4 v4, s[8:11], {s(SWD)} offen lds')
        a(f's_add_u32 m0, {s(SL)}, {(i%16)*2048+1024}\ns_nop 0\nbuffer_load_dwordx4 v5, s[8:11], {s(SWD)} offen lds\ns_add_u32 {s(SWD)}, {s(SWD)}, 16384')
        gb=(i%15)*8
        a(f'buffer_load_dwordx4 {acc(gb,4)}, v3, s[12:15], {s(SG0)} offen offset:{(i&3)*1024}\nbuffer_load_dwordx4 {acc(gb+4,4)}, v3, s[12:15], {s(SG1)} offen offset:{(i&3)*1024}')
        if (i&3)==3: a(f's_add_u32 {s(SG0)}, {s(SG0)}, 4096\ns_add_u32 {s(SG1)}, {s(SG1)}, 4096')
    for i in range(PD): loads(i)
    a(f'v_lshrrev_b32 v6, 5, {v(VL)}\nv_lshlrev_b32 v6, 9, v6\nv_bfe_u32 v7, {v(VL)}, 2, 2\nv_lshl_add_u32 v6, v7, 7, v6\nv_bfe_u32 v7, {v(VL)}, 3, 1\nv_lshl_add_u32 v6, v7, 6, v6')
    a(f'v_bfe_u32 v7, {v(VL)}, 4, 1\nv_lshl_add_u32 v6, v7, 5, v6\nv_and_b32 v7, 3, {v(VL)}\nv_lshl_add_u32 v6, v7, 3, v6\nv_add_u32 v10, {s(SL)}, v6\nv_xor_b32 v11, 64, v10')
    FR=20; ACC=36
    def reads(i):
        return [f'ds_read_b64_tr_b16 {v(FR+8*(i&1)+4*nT+2*rd,2)}, {v(10+nT)} offset:{(i%16)*2048+rd*1024}' for nT in range(2) for rd in range(2)]
    a(f's_waitcnt vmcnt({4*(PD-1)})')
    for r in reads(0): a(r)
    NS=28
    for i in range(NS):
        if i+PD<NS: loads(i+PD)
        last=min(NS-1,i+PD)
        if i+1<NS:
            a(f's_waitcnt vmcnt({4*(last-i-1)})')
            for r in reads(i+1): a(r)
            a('s_waitcnt lgkmcnt(4)')
        else: a('s_waitcnt lgkmcnt(0)')
        gb=(i%15)*8
        for T in range(2):
            for nT in range(2):
                A=ACC+16*(2*T+nT)
                a(f'v_mfma_f32_32x32x16_bf16 {v(A,16)}, {v(FR+8*(i&1)+4*nT,4)}, {acc(gb+4*T,4)}, '+('0' if i==0 else v(A,16)))
    RS=272
    a(f'v_and_b32 v6, 31, {v(VL)}\nv_mul_u32_u24 v6, {RS}, v6\nv_lshrrev_b32 v7, 5, {v(VL)}\nv_lshl_add_u32 v6, v7, 4, v6\nv_add_u32 v6, {s(SL)}, v6')
    a(f'v_lshrrev_b32 v7, 3, v0\nv_mul_u32_u24 v7, {RS}, v7\nv_and_b32 v10, 7, v0\nv_lshl_add_u32 v7, v10, 5, v7\nv_add_u32 v10, 0x10000, v7')
    for T in range(2):
        for nT in range(2):
            for g in range(4):
                a(f'ds_write_b128 v6, {v(ACC+16*(2*T+nT)+4*g,4)} offset:{T*32*RS+nT*128+g*32}')
    a('s_waitcnt lgkmcnt(0)\ns_barrier')
    R=ACC
    for ps in range(2):
        for w in range(4):
            for k in range(2):
                a(f'ds_read_b128 {v(R+32*ps+8*w+4*k,4)}, {v(7 if w<2 else 10)} offset:{(w&1)*32768+ps*32*RS+k*16}')
    for ps in range(2):
        X=FR
        for k in range(4):
            a(f'v_lshlrev_b32 {v(X+2*k)}, 16, {v(HR+4*ps+k)}\nv_and_b32 {v(X+2*k+1)}, 0xffff0000, {v(HR+4*ps+k)}')
        a(f's_waitcnt lgkmcnt({8-8*ps})')
        B=R+32*ps
        for k in range(8): a(f'v_add_f32 {v(B+k)}, {v(B+k)}, {v(B+8+k)}\nv_add_f32 {v(B+16+k)}, {v(B+16+k)}, {v(B+24+k)}')
        for k in range(8): a(f'v_add_f32 {v(B+k)}, {v(B+k)}, {v(B+16+k)}')
        for k in range(8): a(f'v_add_f32 {v(B+k)}, {v(B+k)}, {v(X+k)}')
        for k in range(4): a(f'v_cvt_pk_bf16_f32 {v(B+8+k)}, {v(B+2*k)}, {v(B+2*k+1)}')
        a(f'buffer_store_dwordx4 {v(B+8,4)}, {v(8+ps)}, s[28:31], s25 offen')
    a(f'L_g2_end:\ns_endpgm')
    return 'g2', a, 100+120, 100, 131072

def gen_empty(i):
    a=Asm(); a('s_endpgm'); return 'e%d'%i, a, 8, 8, 0
def build(ks, path):
    hdr=open('cdna_kernels/'+NAME+'.s.ref').read().split('\n')
    out=[l for l in hdr if l.startswith(';') and '@launch' not in l and 'Override' not in l and 'grid=ceil' not in l]
    for n,a,vg,ac,lds in ks: out.append(f'; @launch kernel={n}_kernel grid=(256,1,1) block=(256,1,1) lds={lds}')
    out.append('.amdgcn_target "amdgcn-amd-amdhsa--gfx950"\n.text')
    seen=set()
    for n,a,vg,ac,lds in ks:
        if n in seen: continue
        seen.add(n)
        out.append(f'.text\n.globl {n}_kernel\n.p2align 8\n.type {n}_kernel,@function\n{n}_kernel:')
        out+=['    '+l for l in a.fix()]
        out.append(kd(n+'_kernel',vg,ac))
    open(path,'w').write('\n'.join(out)+'\n')
if __name__=='__main__':
    ks=[gen_k1(),gen_k2(),gen_k3(),gen_k4()]
    build(ks,'cdna_kernels/'+NAME+'.s')
    build(ks+[gen_empty(0),gen_empty(1)],'v_empty2.s')
```

```python
import re
TRANS = ('v_exp_f32','v_log_f32','v_rcp_f32','v_rsq_f32','v_sqrt_f32','v_sin_f32','v_cos_f32')
def regs_of(tok):
    tok = tok.strip()
    neg = tok.lstrip('-')
    if neg.startswith('abs('): neg = neg[4:-1]
    if neg.startswith('|'): neg = neg.strip('|')
    m = re.fullmatch(r'([vas])(\d+)', neg)
    if m: return {(m.group(1), int(m.group(2)))}
    m = re.fullmatch(r'([vas])\[(\d+):(\d+)\]', neg)
    if m: return {(m.group(1), i) for i in range(int(m.group(2)), int(m.group(3))+1)}
    if neg == 'vcc': return {('s', 'vcc')}
    if neg == 'm0': return {('s', 'm0')}
    if neg == 'exec': return {('s','exec')}
    return set()
class Ins:
    def __init__(self, text):
        self.text = text
        t = text.split(';')[0].strip()
        self.label = t.endswith(':')
        sp = t.split(None, 1)
        self.op = sp[0] if sp else ''
        ops = []
        if len(sp) > 1:
            ops = [o.strip() for o in sp[1].split(',')]
            if ops:
                last = ops[-1].split()
                ops[-1] = last[0] if last else ''
                self.mods = last[1:]
        else: self.mods = []
        self.ops = ops
        op = self.op
        self.mfma = op.startswith('v_mfma')
        self.valu = op.startswith('v_') and not self.mfma
        self.trans = any(op.startswith(x) for x in TRANS)
        self.vmem = op.startswith(('buffer_', 'global_'))
        self.ds = op.startswith('ds_')
        self.salu = op.startswith('s_')
        self.lds_dma = self.vmem and 'lds' in self.mods
        self.dpp = any(m.startswith(('quad_perm','row_','wave_')) for m in self.mods)
        self.perml = op.startswith('v_permlane')
        R = [regs_of(o) for o in ops]
        allr = set().union(*R) if R else set()
        d, u = set(), set()
        if self.label or not op: pass
        elif self.vmem:
            if 'store' in op or self.lds_dma or ('atomic' in op and 'sc0' not in self.mods): u = allr
            elif 'atomic' in op: d = R[0]; u = allr
            else: d = R[0]; u = set().union(*R[1:])
        elif self.ds:
            if op.startswith(('ds_write',)): u = allr
            else: d = R[0]; u = set().union(*R[1:])
        elif self.perml and 'swap' in op: d = allr; u = allr
        elif op.startswith('v_cmp'): d = R[0]; u = set().union(*R[1:])
        elif op.startswith(('v_add_co','v_addc_co','v_sub_co')): d = R[0]|R[1]; u = set().union(*R[2:])
        elif op.startswith(('s_cmp','s_cbranch','s_branch','s_waitcnt','s_barrier','s_nop','s_endpgm','s_setprio','s_sleep')): u = allr
        else:
            d = R[0] if R else set(); u = set().union(*R[1:]) if len(R) > 1 else set()
            if op.startswith(('v_fmac','v_dot2c','v_mac','v_pk_fmac')) or self.dpp: u = u | d
        self.d, self.u = d, u
        self.passes = 0
        if self.mfma:
            self.passes = 8 if '32x32' in op else 4
            self.srcC = R[3]; self.srcAB = R[1] | R[2]
        self.wide_store = self.vmem and 'store' in op and ('x4' in op or 'x3' in op)
        self.states = 1
        if op == 's_nop': self.states = int(ops[0]) + 1
        if self.label or not op: self.states = 0
def need(p, c):
    n = 0
    vd = {r for r in p.d if r[0] in 'va'}
    sd = {r for r in p.d if r[0] == 's'}
    if p.valu:
        if c.mfma and vd & c.u: n = max(n, 2)
        if c.valu and c.dpp and vd & c.u: n = max(n, 2)
        if c.perml and vd & c.u: n = max(n, 2)
        if c.op.startswith(('v_readfirstlane','v_readlane')) and vd & c.u: n = max(n, 1)
        if p.trans and c.valu and not c.trans and vd & c.u: n = max(n, 1)
        if sd:
            if c.vmem and sd & c.u: n = max(n, 5)
            if c.valu and sd & c.u: n = max(n, 2)
            if c.valu and ('s','vcc') in sd and c.op.startswith('v_cndmask') : n = max(n, 2)
            if c.salu and sd & c.u: n = max(n, 1)
        if any(m.startswith(('op_sel','dst_sel')) for m in p.mods) and c.valu and vd & (c.u|c.d): n = max(n,1)
    if p.mfma:
        big = {4: 8, 8: 12}[p.passes]
        if c.mfma:
            if c.srcAB & p.d: n = max(n, big)
            if c.srcC & p.d and not (c.srcC == p.d and c.passes == p.passes): n = max(n, big-2)
            if c.d & p.d and not (c.srcC == p.d): n = max(n, big-2)
        elif (c.valu or c.vmem or c.ds) and (p.d & (c.u | c.d)): n = max(n, big)
        if c.valu and (p.srcC & c.d): n = max(n, {4: 3, 8: 7}[p.passes])
    if p.wide_store and (c.valu or c.mfma) and (p.u & c.d & {r for r in p.u if r[0] in 'va'}): n = max(n, 2)
    if p.salu and ('s','m0') in p.d and c.lds_dma: n = max(n, 1)
    if p.op.startswith('v_dot2') and (c.valu or c.mfma or c.vmem or c.ds) and vd & (c.u|c.d):
        if not (c.op == p.op and len(c.ops) > 3 and regs_of(c.ops[3]) & vd and not ((regs_of(c.ops[1])|regs_of(c.ops[2])) & vd)): n = max(n, 3)
    return n
class Asm:
    def __init__(self): self.L = []
    def __call__(self, s, *a):
        for line in s.split('\n'):
            line = line.strip()
            if not line: continue
            md=getattr(self,'mode','')
            if 'nomem' in md and line.startswith('buffer_load'): continue
            if 'nomfma' in md and line.startswith(('v_mfma','ds_read_b64_tr')): continue
            if md and line.startswith('buffer_store_dwordx4'): continue
            self.L.append(line)
    def fix(self):
        out = []; hist = []
        for t in self.L:
            c = Ins(t)
            if c.op and not c.label:
                dist = 0; req = 0
                for p in reversed(hist):
                    if dist >= 20: break
                    k = need(p, c) - dist
                    if k > req: req = k
                    dist += p.states
                while req > 0:
                    k = min(req, 16); nop = Ins('s_nop %d' % (k-1)); out.append(nop.text); hist.append(nop); req -= k
            out.append(t); hist.append(c)
        return out
def v(a, n=1): return 'v%d' % a if n == 1 else 'v[%d:%d]' % (a, a+n-1)
def s(a, n=1): return 's%d' % a if n == 1 else 's[%d:%d]' % (a, a+n-1)
def acc(a, n=1): return 'a%d' % a if n == 1 else 'a[%d:%d]' % (a, a+n-1)
import struct
def f2u(x): return '0x%08x' % struct.unpack('<I', struct.pack('<f', x))[0]
def kd(name, vgpr, accum, sgpr=96):
    return f""".section .rodata,"a"
.p2align 6
.amdhsa_kernel {name}
  .amdhsa_next_free_vgpr {vgpr}
  .amdhsa_next_free_sgpr {sgpr}
  .amdhsa_accum_offset {accum}
  .amdhsa_group_segment_fixed_size 0
  .amdhsa_kernarg_size 96
  .amdhsa_user_sgpr_count 2
  .amdhsa_user_sgpr_kernarg_segment_ptr 1
  .amdhsa_system_sgpr_workgroup_id_x 1
  .amdhsa_float_denorm_mode_32 3
.end_amdhsa_kernel
"""
```

```python
import sys
from asmlib import *
NAME='sequential_preLN__spectral_fnet__geglu_ffn__prompt'
WS_Z=0; WS_HN=2<<20; WS_H=4<<20; WS_G=6<<20; WS_SIZE=268435456
def srd(a, d, argoff, nbytes, tmp=None):
    a(f's_load_dwordx2 {s(d,2)}, s[0:1], {argoff}')
    return lambda: a(f's_mov_b32 {s(d+2)}, {nbytes}\ns_mov_b32 {s(d+3)}, 0x20000')
def head(a, name):
    a(f's_cmp_ge_u32 s2, 256\ns_cbranch_scc1 L_{name}_end')
def lanewave(a, vl, sw):
    a(f'v_lshrrev_b32 v1, 6, v0\nv_and_b32 {v(vl)}, 63, v0\nv_readfirstlane_b32 {s(sw)}, v1')
def k1of(a, sdst, spair, m, st):
    a(f's_sub_u32 {s(sdst)}, 32, {s(spair)}\ns_cmp_eq_u32 {s(spair)}, 0\ns_cselect_b32 {s(sdst)}, 16, {s(sdst)}')

PREF=False
STAMPS=False
def stamp(a,k):
    if STAMPS: a(f's_memrealtime {s(64+2*k,2)}')
    if STAMPS and k==0: a('s_memtime s[86:87]')
def stamp_out(a,kidx,nst):
    if not STAMPS: return
    a(f's_memrealtime {s(64+2*nst,2)}\ns_memtime s[74:75]\ns_waitcnt lgkmcnt(0)\ns_sub_u32 s74, s74, s86\ns_mov_b32 s75, 0x1000000'); nst+=1
    a(f's_lshl_b32 s3, s2, 7\ns_add_u32 s3, s3, {(200<<20)+kidx*256*128}\nv_mov_b32 v1, 0\nv_cmp_eq_u32 vcc, 0, v0\ns_and_saveexec_b64 s[4:5], vcc\ns_cbranch_execz L_st{kidx}')
    for k in range(nst+1):
        a(f'v_mov_b32 v2, {s(64+2*k)}\nv_mov_b32 v3, {s(65+2*k)}\nbuffer_store_dwordx2 v[2:3], v1, s[12:15], s3 offen offset:{8*k}\ns_nop 1')
    a(f'L_st{kidx}:')
def gen_k1(n='p1',kidx=0,mode=''):
    nm=n
    a=Asm(); a.mode=mode; head(a,n); stamp(a,0)
    fx=srd(a,8,0,2097152); fw=srd(a,12,88,WS_SIZE)
    SW,SQ,SS2,SWQ,SSG,ST=16,17,18,19,20,21
    VL,VC,VH=2,3,4
    lanewave(a,VL,SW)
    a(f's_lshr_b32 s3, s2, 3\ns_and_b32 {s(SQ)}, s3, 3\ns_lshr_b32 s3, s3, 2\ns_lshl_b32 s3, s3, 3\ns_and_b32 s4, s2, 7\ns_add_u32 {s(SS2)}, s3, s4')
    a(f'v_and_b32 {v(VC)}, 15, {v(VL)}\nv_lshrrev_b32 {v(VH)}, 4, {v(VL)}')
    a('s_waitcnt lgkmcnt(0)'); fx(); fw()
    a(f's_lshl_b32 s3, {s(SW)}, 3')
    a(f's_lshl_b32 s4, s3, 16\ns_lshl_b32 s5, {s(SS2)}, 10\ns_add_u32 s4, s4, s5')
    a(f's_lshl_b32 s5, s3, 10')
    a(f's_and_b32 s6, s3, 15\ns_lshl_b32 s6, s6, 4')
    a(f'v_lshlrev_b32 v5, 4, {v(VL)}\nv_xor_b32 v5, s6, v5')
    for i in range(8):
        a(f'v_xor_b32 v6, {i*16}, v5' if i*16<=64 else f'v_xor_b32 v6, {hex(i*16)}, v5')
        a(f's_mov_b32 m0, s5\ns_add_u32 s5, s5, 1024')
        a(f'buffer_load_dwordx4 v6, s[8:11], s4 offen lds')
        a(f's_add_u32 s4, s4, 65536')
    if PREF:
        a('s_load_dwordx4 s[32:35], s[0:1], 48\ns_load_dwordx2 s[40:41], s[0:1], 64\ns_waitcnt lgkmcnt(0)')
        a('s_mov_b32 s36, s34\ns_mov_b32 s37, s35\ns_mov_b32 s34, 1835008\ns_mov_b32 s35, 0x20000\ns_mov_b32 s38, 1835008\ns_mov_b32 s39, 0x20000\ns_mov_b32 s42, 1835008\ns_mov_b32 s43, 0x20000')
        a('s_mul_i32 s3, s2, 7168\nv_lshlrev_b32 v7, 4, v0\nv_add_u32 v8, 4096, v7')
        for k in range(3):
            a(f'buffer_load_dwordx4 v[{216+8*k}:{219+8*k}], v7, s[{32+4*k}:{35+4*k}], s3 offen\nbuffer_load_dwordx4 v[{220+8*k}:{223+8*k}], v8, s[{32+4*k}:{35+4*k}], s3 offen')
    a(f's_lshl_b32 {s(SWQ)}, {s(SQ)}, 2\ns_add_u32 {s(SWQ)}, {s(SWQ)}, {s(SW)}')
    a(f's_lshl_b32 s3, {s(SWQ)}, 5\ns_cmp_lt_u32 {s(SQ)}, 2\ns_cselect_b32 s4, 1, -254\ns_cselect_b32 {s(SSG)}, -1.0, 1.0\ns_add_u32 s3, s3, s4')
    VE,VB=5,6
    a(f'v_lshl_add_u32 {v(VE)}, {v(VC)}, 1, s3\nv_cvt_f32_u32 {v(VE)}, {v(VE)}\nv_mul_f32 {v(VE)}, {f2u(1/512)}, {v(VE)}')
    a(f'v_lshlrev_b32 {v(VB)}, 3, {v(VH)}\nv_cvt_f32_u32 {v(VB)}, {v(VB)}\nv_mul_f32 {v(VB)}, {v(VE)}, {v(VB)}')
    TC,TS=16,48; TMP=8
    for st in range(8):
        for jp in range(4):
            for k in range(2):
                c=32*st+2*jp+k
                if c==0: a(f'v_mov_b32 {v(TMP+k)}, {v(VB)}')
                else: a(f'v_fmamk_f32 {v(TMP+k)}, {v(VE)}, {f2u(float(c))}, {v(VB)}')
            a(f'v_cos_f32 {v(TMP+2)}, {v(TMP)}\nv_cos_f32 {v(TMP+3)}, {v(TMP+1)}')
            a(f'v_sin_f32 {v(TMP+4)}, -{v(TMP)}\nv_sin_f32 {v(TMP+5)}, -{v(TMP+1)}')
            a(f'v_cvt_pk_bf16_f32 {v(TC+4*st+jp)}, {v(TMP+2)}, {v(TMP+3)}')
            a(f'v_cvt_pk_bf16_f32 {v(TS+4*st+jp)}, {v(TMP+4)}, {v(TMP+5)}')
    MC,MS,MN=80,88,96
    for T in range(2):
        a(f'v_lshrrev_b32 v5, 1, {v(VC)}\nv_add_u32 v5, {8*T}, v5')
        a(f'v_sub_u32 v6, 32, v5\nv_cmp_eq_u32 vcc, 0, v5\nv_cndmask_b32 v6, v6, 16, vcc')
        a(f'v_and_b32 v7, 1, {v(VC)}\nv_cmp_eq_u32 vcc, 1, v7\nv_cndmask_b32 v5, v5, v6, vcc')
        a(f'v_cvt_f32_u32 v5, v5\nv_mul_f32 v5, {f2u(1/2048)}, v5')
        a(f'v_lshlrev_b32 v6, 8, {v(VH)}\nv_add_u32 v6, {s(SS2)}, v6\nv_cvt_f32_u32 v6, v6\nv_mul_f32 v6, v5, v6')
        for jp in range(4):
            for k in range(2):
                j=2*jp+k; c=64*(16*(j>>2)+(j&3))
                if c==0: a(f'v_mov_b32 {v(TMP+k)}, v6')
                else: a(f'v_fmamk_f32 {v(TMP+k)}, v5, {f2u(float(c))}, v6')
            a(f'v_cos_f32 {v(TMP+2)}, {v(TMP)}\nv_cos_f32 {v(TMP+3)}, {v(TMP+1)}')
            a(f'v_sin_f32 {v(TMP+4)}, {v(TMP)}\nv_sin_f32 {v(TMP+5)}, {v(TMP+1)}')
            a(f'v_cvt_pk_bf16_f32 {v(MC+4*T+jp)}, {v(TMP+2)}, {v(TMP+3)}')
            a(f'v_cvt_pk_bf16_f32 {v(MS+4*T+jp)}, {v(TMP+4)}, {v(TMP+5)}')
            a(f'v_xor_b32 {v(MN+4*T+jp)}, 0x80008000, {v(MS+4*T+jp)}')
    AX=104
    for b in range(4):
        a(f'v_add_u32 v5, {4*b}, {v(VH)}\nv_xor_b32 v5, v5, {v(VC)}\nv_lshlrev_b32 v5, 4, v5\nv_lshl_add_u32 {v(AX+b)}, {v(VC)}, 10, v5')
    AS=108
    a(f'v_lshrrev_b32 v5, 3, {v(VL)}\ns_lshl_b32 s3, {s(SW)}, 3\nv_add_u32 v5, s3, v5')
    a(f'v_lshlrev_b32 v110, 2, v5\nv_add_u32 v110, 0x8000, v110')
    a(f'v_and_b32 v6, 15, v5\nv_and_b32 v7, 7, {v(VL)}\nv_xor_b32 v6, v6, v7\nv_lshlrev_b32 v6, 4, v6\nv_lshl_add_u32 {v(AS)}, v5, 10, v6\nv_xor_b32 {v(AS+1)}, 0x80, {v(AS)}')
    a(f'v_lshlrev_b32 v111, 4, {v(VH)}\nv_add_u32 v111, 0x8000, v111')
    a(f'v_lshrrev_b32 v5, 1, {v(VC)}\nv_lshlrev_b32 v5, 17, v5\nv_and_b32 v6, 1, {v(VC)}\nv_lshl_add_u32 v5, v6, 6, v5\nv_lshl_add_u32 v112, {v(VH)}, 4, v5')
    a(f's_lshl_b32 s3, {s(SS2)}, 11\ns_lshl_b32 s4, {s(SWQ)}, 7\ns_add_u32 {s(ST)}, s3, s4\ns_add_u32 {s(ST+1)}, {s(ST)}, {8<<17}')
    a(f'v_mov_b32 v113, 0x3f803f80')
    stamp(a,1); a('s_waitcnt vmcnt(%d)\ns_barrier'%(6 if PREF else 0)); stamp(a,2); a('s_waitcnt lgkmcnt(0)' if STAMPS else '')
    XS=116
    XF=148; ACC=180
    for i in range(8): a(f'ds_read_b128 {v(XS+4*i,4)}, {v(AS+(i&1))} offset:{(i>>1)*256}')
    reads=[(ks,T) for ks in range(16) for T in range(2)]
    def rd(n):
        ks,T=reads[n]; a(f'ds_read_b128 {v(XF+4*(n%8),4)}, {v(AX+(ks&3))} offset:{T*16384+(ks>>2)*256}')
    for n in range(6): rd(n)
    stats=[]
    for i in range(32):
        stats.append(f'v_dot2_f32_bf16 v{5+(i&1)}, {v(XS+i)}, v113, '+('0' if i<2 else f'v{5+(i&1)}'))
        stats.append(f'v_dot2_f32_bf16 v{7+(i&1)}, {v(XS+i)}, {v(XS+i)}, '+('0' if i<2 else f'v{7+(i&1)}'))
    dp='row_mask:0xf bank_mask:0xf'
    stats+=['v_add_f32 v5, v5, v6','v_add_f32 v7, v7, v8']
    for m in ('quad_perm:[1,0,3,2]','quad_perm:[2,3,0,1]','row_half_mirror'):
        stats+=[f'v_add_f32 v5, v5, v5 {m} {dp}', f'v_add_f32 v7, v7, v7 {m} {dp}']
    stats+=[f'v_mul_f32 v5, {f2u(1/512)}, v5', f'v_mul_f32 v7, {f2u(1/512)}, v7','v_fma_f32 v7, -v5, v5, v7',f'v_add_f32 v7, {f2u(1e-5)}, v7','v_max_f32 v7, v7, v7','v_rsq_f32 v7, v7','s_nop 0','ds_write_b32 v110, v7']
    si=0
    for n in range(32):
        ks,T=reads[n]
        if n+6<32: rd(n+6)
        outst=min(31,n+6)-n
        if si>=len(stats): a('s_waitcnt lgkmcnt(%d)'%outst)
        else: a('s_waitcnt lgkmcnt(%d)'%outst)
        half=ks>>3; st=ks&7
        for c,TB in ((0,TC),(1,TS)):
            A=ACC+half*16+T*8+c*4
            src='0' if st==0 else v(A,4)
            a(f'v_mfma_f32_16x16x32_bf16 {v(A,4)}, {v(XF+4*(n%8),4)}, {v(TB+4*st,4)}, {src}')
            for _ in range(2):
                if si<len(stats)-1: a(stats[si]); si+=1
    a(stats[-1])
    a('s_waitcnt lgkmcnt(0)\ns_barrier')
    RR=XS
    a(f'ds_read_b128 {v(RR,4)}, v111\nds_read_b128 {v(RR+4,4)}, v111 offset:64')
    for T in range(2):
        for c in range(2):
            for r in range(4):
                A=ACC+T*8+c*4+r
                a(f'v_fma_f32 {v(A)}, {s(SSG)}, {v(A+16)}, {v(A)}')
    a('s_waitcnt lgkmcnt(0)')
    FR=XF
    for c in range(2):
        for T in range(2):
            A=ACC+T*8+c*4
            for r in range(4): a(f'v_mul_f32 {v(A+r)}, {v(RR+4*T+r)}, {v(A+r)}')
            for jp in range(2): a(f'v_cvt_pk_bf16_f32 {v(FR+4*c+2*T+jp)}, {v(A+2*jp)}, {v(A+2*jp+1)}')
    Z=ACC+16
    for T in range(2):
        a(f'v_mfma_f32_16x16x32_bf16 {v(Z+8*T,4)}, {v(FR,4)}, {v(MC+4*T,4)}, 0')
        a(f'v_mfma_f32_16x16x32_bf16 {v(Z+8*T+4,4)}, {v(FR+4,4)}, {v(MC+4*T,4)}, 0')
    for T in range(2):
        a(f'v_mfma_f32_16x16x32_bf16 {v(Z+8*T,4)}, {v(FR+4,4)}, {v(MS+4*T,4)}, {v(Z+8*T,4)}')
        a(f'v_mfma_f32_16x16x32_bf16 {v(Z+8*T+4,4)}, {v(FR,4)}, {v(MN+4*T,4)}, {v(Z+8*T+4,4)}')
    for T in range(2):
        for k in range(4): a(f'v_cvt_pk_bf16_f32 {v(ACC+4*T+k)}, {v(Z+8*T+2*k)}, {v(Z+8*T+2*k+1)}')
        a(f'buffer_store_dwordx4 {v(ACC+4*T,4)}, v112, s[12:15], {s(ST+T)} offen')
    stamp(a,3); a('s_waitcnt vmcnt(0)' if STAMPS else ''); stamp_out(a,kidx,4)
    a(f'L_{nm}_end:\ns_endpgm')
    return nm, a, 240, 240, 33024

def gen_k2(n='p2',kidx=1,mode=''):
    a=Asm(); a.mode=mode; head(a,n); stamp(a,0)
    fx=srd(a,8,0,2097152); fw=srd(a,12,88,WS_SIZE)
    SW,SP,SJ,SK1B=16,17,18,19
    VL,VC,VH=2,3,4
    lanewave(a,VL,SW)
    a(f's_and_b32 s3, s2, 15\ns_mov_b32 {s(SP)}, s3\ns_lshr_b32 {s(SJ)}, s2, 4')
    a(f'v_and_b32 {v(VC)}, 15, {v(VL)}\nv_lshrrev_b32 {v(VH)}, 4, {v(VL)}')
    k1of(a,SK1B,SP,1,0)
    a(f'v_bfe_u32 v5, {v(VL)}, 2, 3\nv_lshlrev_b32 v5, 11, v5\nv_lshrrev_b32 v6, 5, {v(VL)}\nv_lshl_add_u32 v5, v6, 6, v5\nv_and_b32 v6, 3, {v(VL)}\nv_lshl_add_u32 v5, v6, 4, v5')
    a(f's_lshl_b32 s3, {s(SW)}, 9\ns_lshl_b32 s4, {s(SP)}, 17\ns_add_u32 s4, s4, s3\ns_lshl_b32 s5, {s(SW)}, 15')
    a(f's_cmp_ge_u32 {s(SW)}, 2\ns_cselect_b32 s6, {s(SK1B)}, {s(SP)}\ns_lshl_b32 s7, {s(SJ)}, 2\ns_and_b32 s20, {s(SW)}, 1\ns_lshl_b32 s20, s20, 1\ns_add_u32 s7, s7, s20\ns_lshl_b32 s7, s7, 5\ns_add_u32 s6, s6, s7\ns_lshl_b32 s21, s6, 10')
    VXO=7
    a(f'v_lshrrev_b32 v6, 5, {v(VL)}\nv_lshlrev_b32 v6, 15, v6\nv_and_b32 v8, 31, {v(VL)}\nv_lshl_add_u32 {v(VXO)}, v8, 4, v6')
    a('s_waitcnt lgkmcnt(0)'); fx(); fw()
    XR=12
    a(f'buffer_load_dwordx4 {v(XR,4)}, {v(VXO)}, s[8:11], s21 offen\nbuffer_load_dwordx4 {v(XR+4,4)}, {v(VXO)}, s[8:11], s21 offen offset:512')
    for sb in range(8):
        for ct in range(4):
            a(f's_add_u32 m0, s5, {sb*4096+ct*1024-ct*128}')
            if ct==0 and sb>0: a(f's_add_u32 s4, s4, 16384')
            else: a('s_nop 0')
            a(f'buffer_load_dwordx4 v5, s[12:15], s4 offen offset:{ct*128} lds')
    AM=20
    a(f'v_and_b32 v8, 3, {v(VC)}\ns_lshl_b32 s3, {s(SJ)}, 2\nv_add_u32 v8, s3, v8')
    a(f'v_and_b32 v9, 1, {v(VH)}\nv_cvt_f32_u32 v9, v9\nv_mul_f32 v9, {f2u(-0.25)}, v9\nv_sub_f32 v10, {f2u(-0.25)}, v9')
    a(f'v_lshlrev_b32 v11, 2, {v(VH)}\nv_cvt_f32_u32 v11, v11')
    T0=52
    for m in range(2):
        if m==0: a(f's_cmp_eq_u32 {s(SP)}, 0\ns_cselect_b32 s3, 64, 63')
        else: a('s_mov_b32 s3, 63')
        a(f'v_sub_u32 {v(T0)}, s3, v8\nv_and_b32 {v(T0+1)}, 4, {v(VC)}\nv_cmp_eq_u32 vcc, 0, {v(T0+1)}\nv_cndmask_b32 {v(T0)}, {v(T0)}, v8, vcc')
        a(f'v_cvt_f32_u32 {v(T0)}, {v(T0)}\nv_mul_f32 {v(T0)}, {f2u(1/64)}, {v(T0)}')
        a(f'v_fma_f32 {v(T0+1)}, {v(T0)}, v11, v9\nv_fma_f32 {v(T0+2)}, {v(T0)}, v11, v10')
        for st in range(4):
            for jp in range(4):
                for k in range(2):
                    jj=2*jp+k; c=16*st+(jj&3); b=T0+1+(jj>>2)
                    if c==0: a(f'v_mov_b32 {v(T0+3+k)}, {v(b)}')
                    else: a(f'v_fmamk_f32 {v(T0+3+k)}, {v(T0)}, {f2u(float(c))}, {v(b)}')
                a(f'v_cos_f32 {v(T0+5)}, {v(T0+3)}\nv_cos_f32 {v(T0+6)}, {v(T0+4)}')
                a(f'v_cvt_pk_bf16_f32 {v(AM+16*m+4*st+jp)}, {v(T0+5)}, {v(T0+6)}')
    a(f'v_lshrrev_b32 v52, 1, {v(VH)}\nv_lshlrev_b32 v52, 12, v52\nv_and_b32 v53, 1, {v(VH)}\nv_lshl_add_u32 v52, v53, 8, v52\nv_lshl_add_u32 v52, v53, 3, v52')
    a(f'v_bfe_u32 v53, {v(VL)}, 2, 2\nv_lshl_add_u32 v52, v53, 6, v52\nv_and_b32 v53, 3, {v(VL)}\nv_lshl_add_u32 v52, v53, 4, v52\nv_add_u32 v60, s5, v52\nv_xor_b32 v61, 8, v60')
    YB=131072; YS=2048
    a(f's_lshl_b32 s3, {s(SW)}, 7\ns_cmp_lt_u32 {s(SW)}, 2\ns_cselect_b32 s4, 1, -254\ns_add_u32 s3, s3, s4')
    a(f'v_lshl_add_u32 v52, {v(VC)}, 1, s3\nv_sub_u32 v53, 0x200, v52\nv_cmp_eq_u32 vcc, 0, {v(VH)}\nv_cndmask_b32 v52, v53, v52, vcc\nv_lshlrev_b32 v52, 2, v52')
    a(f'v_mov_b32 v53, 0x80\nv_mov_b32 v54, 0xffffff80\nv_cndmask_b32 v53, v54, v53, vcc')
    a(f's_cmp_eq_u32 {s(SP)}, 0\ns_cselect_b32 s3, 0, {4*YS}')
    a(f'v_mov_b32 v54, s3\nv_cndmask_b32 v54, v54, 0, vcc\nv_add_u32 v52, {YB}, v52')
    for m in range(2):
        a(f'v_xor_b32 v55, {hex(m*4*YS)}, v54\nv_add_u32 {v(62+4*m)}, v55, v52')
        for ct in range(1,4): a(f'v_add_u32 {v(62+4*m+ct)}, v53, {v(62+4*m+ct-1)}')
    a(f'v_and_b32 v52, 7, {v(VL)}\nv_lshlrev_b32 v52, 11, v52\nv_add_u32 v52, {YB}, v52\nv_mov_b32 v53, 0\nds_write_b32 v52, v53')
    stamp(a,1); a('s_waitcnt lgkmcnt(0)' if STAMPS else '')
    ACC=72; BF=104
    for st in range(4):
        a(f's_waitcnt vmcnt({24-8*st})')
        for m in range(2):
            for ct in range(4):
                b=BF+4*(4*m+ct); o=st*8192+ct*1024+m*512
                a(f'ds_read_b64_tr_b16 {v(b,2)}, v60 offset:{o}\nds_read_b64_tr_b16 {v(b+2,2)}, v61 offset:{o}')
        for i in range(8):
            m,ct=i>>2,i&3
            a(f's_waitcnt lgkmcnt({14-2*i})')
            A=ACC+4*i
            a(f'v_mfma_f32_16x16x32_bf16 {v(A,4)}, {v(AM+16*m+4*st,4)}, {v(BF+4*i,4)}, '+('0' if st==0 else v(A,4)))
    stamp(a,2); a('s_mov_b64 exec, 0xffffffff')
    for i in range(8):
        for r in range(4): a(f'ds_write_b32 {v(62+i)}, {v(ACC+4*i+r)} offset:{r*YS}')
    a('s_mov_b64 exec, -1')
    a(f's_lshl_b32 s3, {s(SW)}, 12\ns_add_u32 s3, s3, {YB}\nv_lshrrev_b32 v52, 5, {v(VL)}\nv_lshlrev_b32 v52, 11, v52\nv_and_b32 v53, 31, {v(VL)}\nv_lshl_add_u32 v52, v53, 5, v52\nv_add_u32 v52, s3, v52')
    a(f'v_lshrrev_b32 v54, 1, v53\nv_lshlrev_b32 v54, 10, v54\nv_and_b32 v55, 1, v53\nv_lshl_add_u32 v54, v55, 9, v54\nv_lshrrev_b32 v55, 5, {v(VL)}\nv_lshl_add_u32 v54, v55, 4, v54')
    a(f's_lshl_b32 s3, {s(SP)}, 2\ns_lshr_b32 s4, {s(SJ)}, 2\ns_add_u32 s3, s3, s4\ns_lshl_b32 s3, s3, 15\ns_and_b32 s4, {s(SJ)}, 3\ns_lshl_b32 s4, s4, 7\ns_add_u32 s3, s3, s4\ns_lshl_b32 s4, {s(SW)}, 5\ns_add_u32 s3, s3, s4\ns_add_u32 s22, s3, {WS_HN}\ns_add_u32 s23, s22, 16384\ns_add_u32 s24, s21, {WS_H}')
    a('s_waitcnt lgkmcnt(0)\ns_barrier')
    Y=72
    for k in range(4): a(f'ds_read_b128 {v(Y+4*k,4)}, v52 offset:{(k>>1)*1024+(k&1)*16}')
    X=88
    for k in range(8):
        a(f'v_lshlrev_b32 {v(X+2*k)}, 16, {v(XR+k)}\nv_and_b32 {v(X+2*k+1)}, 0xffff0000, {v(XR+k)}')
    a('s_waitcnt lgkmcnt(0)')
    for k in range(16): a(f'v_add_f32 {v(Y+k)}, {v(Y+k)}, {v(X+k)}')
    for k in range(8): a(f'v_cvt_pk_bf16_f32 {v(XR+k)}, {v(Y+2*k)}, {v(Y+2*k+1)}')
    a(f'buffer_store_dwordx4 {v(XR,4)}, {v(VXO)}, s[12:15], s24 offen\nbuffer_store_dwordx4 {v(XR+4,4)}, {v(VXO)}, s[12:15], s24 offen offset:512')
    for k in range(8):
        a(f'v_lshlrev_b32 {v(X+2*k)}, 16, {v(XR+k)}\nv_and_b32 {v(X+2*k+1)}, 0xffff0000, {v(XR+k)}')
    dp='row_mask:0xf bank_mask:0xf'
    def red(r,t):
        for m in ('quad_perm:[1,0,3,2]','quad_perm:[2,3,0,1]','row_half_mirror','row_mirror'):
            a(f'v_add_f32 {v(r)}, {v(r)}, {v(r)} {m} {dp}')
        a(f'v_mov_b32 {v(t)}, {v(r)}\nv_permlane16_swap_b32 {v(r)}, {v(t)}\nv_add_f32 {v(r)}, {v(r)}, {v(t)}')
    for k in range(8): a(f'v_add_f32 {v(Y+k)}, {v(X+k)}, {v(X+8+k)}')
    for k in range(4): a(f'v_add_f32 {v(Y+k)}, {v(Y+k)}, {v(Y+4+k)}')
    a(f'v_add_f32 {v(Y)}, {v(Y)}, {v(Y+2)}\nv_add_f32 {v(Y+1)}, {v(Y+1)}, {v(Y+3)}\nv_add_f32 {v(Y)}, {v(Y)}, {v(Y+1)}')
    red(Y,Y+1)
    a(f'v_mul_f32 {v(Y)}, {f2u(-1/512)}, {v(Y)}')
    for k in range(16): a(f'v_add_f32 {v(X+k)}, {v(X+k)}, {v(Y)}')
    a(f'v_mul_f32 {v(Y+2)}, {v(X)}, {v(X)}\nv_mul_f32 {v(Y+3)}, {v(X+1)}, {v(X+1)}')
    for k in range(2,16): a(f'v_fmac_f32 {v(Y+2+(k&1))}, {v(X+k)}, {v(X+k)}')
    a(f'v_add_f32 {v(Y+2)}, {v(Y+2)}, {v(Y+3)}')
    red(Y+2,Y+3)
    a(f'v_mov_b32 {v(Y+4)}, {f2u(1e-5)}\nv_fmac_f32 {v(Y+4)}, {f2u(1/512)}, {v(Y+2)}\nv_rsq_f32 {v(Y+4)}, {v(Y+4)}')
    for k in range(16): a(f'v_mul_f32 {v(X+k)}, {v(X+k)}, {v(Y+4)}')
    for k in range(8): a(f'v_cvt_pk_bf16_f32 {v(Y+8+k)}, {v(X+2*k)}, {v(X+2*k+1)}')
    a(f'buffer_store_dwordx4 {v(Y+8,4)}, v54, s[12:15], s22 offen\nbuffer_store_dwordx4 {v(Y+12,4)}, v54, s[12:15], s23 offen')
    stamp(a,3); a('s_waitcnt vmcnt(0)' if STAMPS else ''); stamp_out(a,kidx,4)
    a(f'L_{n}_end:\ns_endpgm')
    return n, a, 136, 136, 147456

C1=-2.302208198; C2=C1*0.044715
def gelu_ops(G,U,T,SC1,SC2):
    return [f'v_mul_f32 {v(T)}, {v(G)}, {v(G)}', f'v_fma_f32 {v(T)}, {v(T)}, {s(SC2)}, {v(SC1)}', f'v_mul_f32 {v(T)}, {v(T)}, {v(G)}',
            f'v_exp_f32 {v(T)}, {v(T)}', f'v_mul_f32 {v(G)}, {v(G)}, {v(U)}', f'v_add_f32 {v(T)}, 1.0, {v(T)}', f'v_rcp_f32 {v(T)}, {v(T)}', None, f'v_mul_f32 {v(G)}, {v(G)}, {v(T)}']
def gen_k3(n='g1',kidx=2,mode=''):
    a=Asm(); a.mode=mode; head(a,n); stamp(a,0)
    a('s_load_dwordx4 s[4:7], s[0:1], 48'); fw=srd(a,12,88,WS_SIZE)
    SW,SP,SNS,SWO,SHO,SM0=16,17,18,19,20,21
    VL=2
    lanewave(a,VL,SW)
    a(f's_and_b32 s3, s2, 1\ns_lshl_b32 s3, s3, 3\ns_bfe_u32 s22, s2, {hex(3|(3<<16))}\ns_add_u32 {s(SP)}, s3, s22')
    a(f's_bfe_u32 s3, s2, {hex(1|(2<<16))}\ns_lshl_b32 s3, s3, 2\ns_lshr_b32 s22, s2, 6\ns_add_u32 {s(SNS)}, s3, s22')
    VD=4
    a(f's_and_b32 s3, {s(SW)}, 1\ns_mul_i32 s3, s3, 448\nv_add_u32 v3, s3, {v(VL)}\ns_mov_b32 s22, {(2**32+13)//14}')
    for i in range(7):
        a(f'v_mul_hi_u32 v11, v3, s22\nv_mul_u32_u24 v12, 14, v11\nv_sub_u32 v12, v3, v12\nv_mul_u32_u24 v11, 0xe00, v11\nv_lshl_add_u32 {v(VD+i)}, v12, 4, v11')
        if i<6: a('v_add_u32 v3, 64, v3')
    STG=28928; UPO=14336+128
    a(f's_mul_i32 {s(SWO)}, {s(SNS)}, 224')
    a(f's_lshl_b32 s3, {s(SP)}, 2\ns_add_u32 s3, s3, {s(SW)}\ns_lshl_b32 {s(SHO)}, s3, 15\ns_add_u32 {s(SHO)}, {s(SHO)}, {WS_HN}')
    a(f's_mul_i32 s23, s3, 112\ns_mul_i32 s22, {s(SNS)}, 7\ns_add_u32 s23, s23, s22\ns_lshl_b32 s23, s23, 10\ns_add_u32 s23, s23, {WS_G}\ns_add_u32 s24, s23, 4096')
    a(f's_and_b32 s3, {s(SW)}, 1\ns_mul_i32 s3, s3, 7168\ns_cmp_ge_u32 {s(SW)}, 2\ns_cselect_b32 s22, {UPO}, 0\ns_add_u32 {s(SM0)}, s3, s22')
    a(f'v_lshlrev_b32 v3, 4, {v(VL)}')
    a('s_waitcnt lgkmcnt(0)'); fw()
    a(f's_cmp_ge_u32 {s(SW)}, 2\ns_cselect_b32 s8, s6, s4\ns_cselect_b32 s9, s7, s5\ns_mov_b32 s10, 1835008\ns_mov_b32 s11, 0x20000')
    def group(g):
        for i in range(7):
            a(f's_add_u32 m0, {s(SM0)}, {(g%5)*STG+i*1024}')
            a('s_nop 0')
            a(f'buffer_load_dwordx4 {v(VD+i)}, s[8:11], {s(SWO)} offen lds')
        a(f's_add_u32 {s(SWO)}, {s(SWO)}, {64*3584}')
        for i in range(4):
            a(f'buffer_load_dwordx4 {acc(16*g+4*i,4)}, v3, s[12:15], {s(SHO)} offen offset:{i*1024}')
        a(f's_add_u32 {s(SHO)}, {s(SHO)}, 4096')
    for g in range(5): group(g)
    VA=12
    a(f'v_lshrrev_b32 v17, 5, {v(VL)}\nv_mul_u32_u24 v17, {8*224}, v17\nv_bfe_u32 v18, {v(VL)}, 2, 2\nv_mul_u32_u24 v18, 0xe0, v18\nv_add_u32 v17, v17, v18')
    a(f'v_bfe_u32 v18, {v(VL)}, 4, 1\nv_lshl_add_u32 v17, v18, 4, v17\nv_and_b32 v18, 1, {v(VL)}\nv_lshl_add_u32 v17, v18, 3, v17\nv_bfe_u32 v18, {v(VL)}, 1, 1\nv_mul_u32_u24 v18, {UPO}, v18\nv_add_u32 {v(VA)}, v17, v18')
    for i in range(1,5): a(f'v_add_u32 {v(VA+i)}, {STG}, {v(VA+i-1)}')
    a(f's_mov_b32 s25, {f2u(C2)}\nv_mov_b32 v17, {f2u(C1)}')
    FR=20; ACC=76
    def reads(ks):
        g=ks>>2; l=ks&3; out=[]
        for jt in range(7):
            for rd in range(2):
                out.append(f'ds_read_b64_tr_b16 {v(FR+28*(ks&1)+4*jt+2*rd,2)}, {v(VA+g%5)} offset:{l*16*224+rd*4*224+jt*32}')
        return out
    a('s_waitcnt vmcnt(44)\ns_barrier'); stamp(a,1); a('s_waitcnt lgkmcnt(0)' if STAMPS else '')
    for r in reads(0): a(r)
    issued=5
    for ks in range(32):
        nxt=[]
        a('s_waitcnt lgkmcnt(0)')
        if ks<31:
            if (ks&3)==3:
                g=(ks>>2)+1
                a(f's_waitcnt vmcnt({11*(issued-1-g)})\ns_barrier')
            nxt=reads(ks+1)
        dma = (ks&3)==3 and issued<8
        for jt in range(7):
            A=ACC+16*jt
            a(f'v_mfma_f32_32x32x16_bf16 {v(A,16)}, {v(FR+28*(ks&1)+4*jt,4)}, {acc(4*ks,4)}, '+('0' if ks==0 else v(A,16)))
            for r in nxt[2*jt:2*jt+2]: a(r)
            if dma and jt==1: group(issued); issued+=1
    stamp(a,2)
    T=FR
    for jt in range(7):
        A=ACC+16*jt
        seqs=[gelu_ops(A+8*(j>>2)+(j&3),A+8*(j>>2)+4+(j&3),T+j,17,25) for j in range(8)]
        for k in range(9):
            for q in seqs:
                if q[k]: a(q[k])
        O=T+8+4*(jt&1)
        for jp in range(4):
            g0=A+8*(jp>>1)+2*(jp&1)
            a(f'v_cvt_pk_bf16_f32 {v(O+jp)}, {v(g0)}, {v(g0+1)}')
        a(f'buffer_store_dwordx4 {v(O,4)}, v3, s[12:15], {s(23+(jt>>2))} offen offset:{(jt&3)*1024}')
    stamp(a,3); a('s_waitcnt vmcnt(0)' if STAMPS else ''); stamp_out(a,kidx,4)
    a(f'L_{n}_end:\ns_endpgm')
    return n, a, 188+128, 188, 5*STG

def gen_k4(n='g2',kidx=3,mode=''):
    a=Asm(); a.mode=mode; head(a,n); stamp(a,0)
    fd=srd(a,8,64,1835008); fw=srd(a,12,88,WS_SIZE); fo=srd(a,28,72,2097152)
    SW,SMT,SNT,SG0,SG1,SWD,SL=16,17,18,19,20,21,22
    VL=2; PD=14
    lanewave(a,VL,SW)
    a(f's_and_b32 s3, s2, 7\ns_lshl_b32 s3, s3, 2\ns_bfe_u32 s4, s2, {hex(3|(2<<16))}\ns_add_u32 {s(SMT)}, s3, s4\ns_lshr_b32 {s(SNT)}, s2, 5')
    a(f's_mul_i32 s3, {s(SMT)}, 224\ns_mul_i32 s4, {s(SW)}, 28\ns_add_u32 s3, s3, s4\ns_lshl_b32 s3, s3, 10\ns_add_u32 {s(SG0)}, s3, {WS_G}\ns_add_u32 {s(SG1)}, {s(SG0)}, {112*1024}')
    a(f's_lshl_b32 s4, s4, 14\ns_lshl_b32 s3, {s(SNT)}, 7\ns_add_u32 {s(SWD)}, s3, s4\ns_lshl_b32 {s(SL)}, {s(SW)}, 15')
    a(f'v_lshlrev_b32 v3, 4, {v(VL)}')
    a(f'v_lshrrev_b32 v5, 3, {v(VL)}\nv_bfe_u32 v6, {v(VL)}, 4, 1\nv_lshlrev_b32 v6, 2, v6\nv_and_b32 v7, 7, {v(VL)}\nv_xor_b32 v6, v6, v7\nv_lshlrev_b32 v6, 4, v6\nv_lshl_add_u32 v4, v5, 10, v6\nv_add_u32 v5, 0x2000, v4')
    a(f's_lshr_b32 s23, {s(SMT)}, 1'); k1of(a,24,23,1,0)
    a(f'v_lshrrev_b32 v6, 3, v0\ns_and_b32 s3, {s(SMT)}, 1\ns_lshl_b32 s3, s3, 6\nv_add_u32 v6, s3, v6')
    a(f'v_lshrrev_b32 v7, 3, v6\nv_lshlrev_b32 v7, 2, v7\nv_and_b32 v10, 3, v6\nv_add_u32 v7, v7, v10\nv_lshlrev_b32 v7, 5, v7')
    a(f'v_mov_b32 v10, s23\nv_mov_b32 v11, s24\nv_and_b32 v6, 4, v6\nv_cmp_eq_u32 vcc, 0, v6\nv_cndmask_b32 v10, v11, v10, vcc\nv_add_u32 v7, v7, v10\nv_lshlrev_b32 v7, 10, v7')
    a(f'v_and_b32 v6, 7, v0\nv_lshl_add_u32 v8, v6, 4, v7\nv_add_u32 v9, {16*32*1024}, v8\ns_lshl_b32 s25, {s(SNT)}, 7\ns_add_u32 s26, s25, {WS_H}')
    a('s_waitcnt lgkmcnt(0)'); fd(); fw(); fo()
    HR=12
    a(f'buffer_load_dwordx4 {v(HR,4)}, v8, s[12:15], s26 offen\nbuffer_load_dwordx4 {v(HR+4,4)}, v9, s[12:15], s26 offen')
    def loads(i):
        a(f's_add_u32 m0, {s(SL)}, {(i%16)*2048}\ns_nop 0\nbuffer_load_dwordx4 v4, s[8:11], {s(SWD)} offen lds')
        a(f's_add_u32 m0, {s(SL)}, {(i%16)*2048+1024}\ns_nop 0\nbuffer_load_dwordx4 v5, s[8:11], {s(SWD)} offen lds\ns_add_u32 {s(SWD)}, {s(SWD)}, 16384')
        gb=(i%15)*8
        a(f'buffer_load_dwordx4 {acc(gb,4)}, v3, s[12:15], {s(SG0)} offen offset:{(i&3)*1024}\nbuffer_load_dwordx4 {acc(gb+4,4)}, v3, s[12:15], {s(SG1)} offen offset:{(i&3)*1024}')
        if (i&3)==3: a(f's_add_u32 {s(SG0)}, {s(SG0)}, 4096\ns_add_u32 {s(SG1)}, {s(SG1)}, 4096')
    for i in range(PD): loads(i)
    a(f'v_lshrrev_b32 v6, 5, {v(VL)}\nv_lshlrev_b32 v6, 9, v6\nv_bfe_u32 v7, {v(VL)}, 2, 2\nv_lshl_add_u32 v6, v7, 7, v6\nv_bfe_u32 v7, {v(VL)}, 3, 1\nv_lshl_add_u32 v6, v7, 6, v6')
    a(f'v_bfe_u32 v7, {v(VL)}, 4, 1\nv_lshl_add_u32 v6, v7, 5, v6\nv_and_b32 v7, 3, {v(VL)}\nv_lshl_add_u32 v6, v7, 3, v6\nv_add_u32 v10, {s(SL)}, v6\nv_xor_b32 v11, 64, v10')
    FR=20; ACC=36
    def reads(i):
        return [f'ds_read_b64_tr_b16 {v(FR+8*(i&1)+4*nT+2*rd,2)}, {v(10+nT)} offset:{(i%16)*2048+rd*1024}' for nT in range(2) for rd in range(2)]
    a(f's_waitcnt vmcnt({4*(PD-1)})'); stamp(a,1); a('s_waitcnt lgkmcnt(0)' if STAMPS else '')
    for r in reads(0): a(r)
    NS=28
    for i in range(NS):
        if i+PD<NS: loads(i+PD)
        last=min(NS-1,i+PD)
        if i+1<NS:
            a(f's_waitcnt vmcnt({4*(last-i-1)})')
            for r in reads(i+1): a(r)
            a('s_waitcnt lgkmcnt(4)')
        else: a('s_waitcnt lgkmcnt(0)')
        gb=(i%15)*8
        for T in range(2):
            for nT in range(2):
                A=ACC+16*(2*T+nT)
                a(f'v_mfma_f32_32x32x16_bf16 {v(A,16)}, {v(FR+8*(i&1)+4*nT,4)}, {acc(gb+4*T,4)}, '+('0' if i==0 else v(A,16)))
    stamp(a,2)
    RS=272
    a(f'v_and_b32 v6, 31, {v(VL)}\nv_mul_u32_u24 v6, {RS}, v6\nv_lshrrev_b32 v7, 5, {v(VL)}\nv_lshl_add_u32 v6, v7, 4, v6\nv_add_u32 v6, {s(SL)}, v6')
    a(f'v_lshrrev_b32 v7, 3, v0\nv_mul_u32_u24 v7, {RS}, v7\nv_and_b32 v10, 7, v0\nv_lshl_add_u32 v7, v10, 5, v7\nv_add_u32 v10, 0x10000, v7')
    for T in range(2):
        for nT in range(2):
            for g in range(4):
                a(f'ds_write_b128 v6, {v(ACC+16*(2*T+nT)+4*g,4)} offset:{T*32*RS+nT*128+g*32}')
    a('s_waitcnt lgkmcnt(0)\ns_barrier')
    R=ACC
    for ps in range(2):
        for w in range(4):
            for k in range(2):
                a(f'ds_read_b128 {v(R+32*ps+8*w+4*k,4)}, {v(7 if w<2 else 10)} offset:{(w&1)*32768+ps*32*RS+k*16}')
    for ps in range(2):
        X=FR
        for k in range(4):
            a(f'v_lshlrev_b32 {v(X+2*k)}, 16, {v(HR+4*ps+k)}\nv_and_b32 {v(X+2*k+1)}, 0xffff0000, {v(HR+4*ps+k)}')
        a(f's_waitcnt lgkmcnt({8-8*ps})')
        B=R+32*ps
        for k in range(8): a(f'v_add_f32 {v(B+k)}, {v(B+k)}, {v(B+8+k)}\nv_add_f32 {v(B+16+k)}, {v(B+16+k)}, {v(B+24+k)}')
        for k in range(8): a(f'v_add_f32 {v(B+k)}, {v(B+k)}, {v(B+16+k)}')
        for k in range(8): a(f'v_add_f32 {v(B+k)}, {v(B+k)}, {v(X+k)}')
        for k in range(4): a(f'v_cvt_pk_bf16_f32 {v(B+8+k)}, {v(B+2*k)}, {v(B+2*k+1)}')
        a(f'buffer_store_dwordx4 {v(B+8,4)}, {v(8+ps)}, s[28:31], s25 offen')
    stamp(a,3); a('s_waitcnt vmcnt(0)' if STAMPS else ''); stamp_out(a,kidx,4)
    a(f'L_{n}_end:\ns_endpgm')
    return n, a, 100+120, 100, 131072

WS_F=16<<20
def gen_p12(fs=4):
    global STAMPS
    sv=STAMPS; STAMPS=False
    n1,a1,_,_,_=gen_k1(); n2,a2,_,_,_=gen_k2()
    STAMPS=sv
    a=Asm()
    L1=a1.L[:-2]; L2=a2.L[2:-2]
    a(L1[0]); a(L1[1].replace('p1','p12')); stamp(a,0)
    a('s_load_dwordx2 s[28:29], s[0:1], 80\ns_mov_b32 s30, 256\ns_mov_b32 s31, 0x20000\nv_mov_b32 v214, v0')
    done=False
    for l in L1[2:]:
        if l.startswith('buffer_store'): l+=' sc1'
        a(l)
        if not done and l.startswith('s_mov_b32 s15'):
            done=True
            a('s_or_b32 s3, s2, s16\ns_cmp_lg_u32 s3, 0\ns_cbranch_scc1 L_noreset')
            a(f'v_mov_b32 v8, 0\nv_mov_b32 v9, 0\nv_mov_b32 v10, 0\nv_mov_b32 v11, 0\nv_lshlrev_b32 v5, 4, v2\ns_mov_b32 s3, {WS_F}')
            for i in range(fs//4): a(f'buffer_store_dwordx4 v[8:11], v5, s[12:15], s3 offen offset:{i*1024} sc1')
            a('s_waitcnt vmcnt(0)\nv_mov_b32 v8, 1\nv_mov_b32 v9, 0\nbuffer_store_dword v8, v9, s[28:31], 0 offen sc1\nL_noreset:')
    stamp(a,1)
    a('v_mov_b32 v0, v214\ns_cmp_lg_u32 s16, 0\ns_cbranch_scc1 L_w1\nv_mov_b32 v9, 0\ns_mov_b32 s27, 0\nL_rdy:\ns_add_u32 s27, s27, 1\ns_cmp_gt_u32 s27, 0x40000\ns_cbranch_scc1 L_w1\nbuffer_load_dword v8, v9, s[28:31], 0 offen sc1\ns_waitcnt vmcnt(0)\nv_readfirstlane_b32 s3, v8\ns_cmp_eq_u32 s3, 0\ns_cbranch_scc1 L_rdy\nL_w1:')
    a('s_waitcnt vmcnt(0)\ns_barrier')
    stamp(a,2)
    a(f's_cmp_lg_u32 s16, 0\ns_cbranch_scc1 L_w2\ns_mul_i32 s3, s2, {fs}\ns_add_u32 s3, s3, {WS_F}\nv_mov_b32 v8, 1\nv_mov_b32 v9, 0\ns_mov_b64 exec, 1\nbuffer_store_dword v8, v9, s[12:15], s3 offen sc1\ns_mov_b64 exec, -1\nL_w2:')
    i0=next(i for i,l in enumerate(L2) if l.startswith('s_add_u32 m0, s5'))
    i1=max(i for i,l in enumerate(L2) if l.endswith(' lds'))+1
    i2=next(i for i,l in enumerate(L2) if l.startswith('s_waitcnt vmcnt(24)'))
    for l in L2[:i0]: a(l)
    a('s_mov_b32 s26, s4')
    for l in L2[i1:i2]: a(l)
    stamp(a,5)
    a(f's_cmp_lg_u32 s16, 0\ns_cbranch_scc1 L_w3\nv_lshlrev_b32 v120, {2+(fs.bit_length()-1)}, v2\ns_mov_b32 s3, {WS_F}\ns_mov_b32 s27, 0\nL_poll:\ns_add_u32 s27, s27, 1\ns_cmp_gt_u32 s27, 0x40000\ns_cbranch_scc1 L_w3')
    if fs==4: a('buffer_load_dwordx4 v[124:127], v120, s[12:15], s3 offen sc1')
    else:
        for k in range(4): a(f'buffer_load_dword v{124+k}, v120, s[12:15], s3 offen offset:{k*fs} sc1')
    a('s_waitcnt vmcnt(0)\nv_and_b32 v124, v124, v125\nv_and_b32 v126, v126, v127\nv_and_b32 v124, v124, v126\nv_cmp_eq_u32 vcc, 1, v124\ns_cmp_eq_u64 vcc, exec\ns_cbranch_scc0 L_poll\nL_w3:\ns_barrier')
    stamp(a,6)
    a('s_waitcnt lgkmcnt(0)\ns_mov_b32 s4, s26')
    for l in L2[i0:i1]: a(l.replace(' lds',' sc1 lds') if l.endswith(' lds') else l)
    first=True
    for l in L2[i2:]:
        a(l)
        if l.startswith('s_mov_b64 exec, 0xff'): stamp(a,7)
    stamp(a,3); a('s_waitcnt vmcnt(0)' if STAMPS else '')
    if STAMPS:
        a('s_memrealtime s[72:73]\ns_waitcnt lgkmcnt(0)')
        a(f's_lshl_b32 s3, s2, 7\ns_add_u32 s3, s3, {(200<<20)}\nv_mov_b32 v1, 0\nv_cmp_eq_u32 vcc, 0, v0\ns_and_saveexec_b64 s[4:5], vcc\ns_cbranch_execz L_st0')
        for j,k in enumerate((0,1,2,5,6,7,3,4)):
            a(f'v_mov_b32 v2, {s(64+2*k)}\nv_mov_b32 v3, {s(65+2*k)}\nbuffer_store_dwordx2 v[2:3], v1, s[12:15], s3 offen offset:{8*(j if j<5 else j+1)}\ns_nop 1')
        a('L_st0:')
    a('L_p12_end:\ns_endpgm')
    return 'p12', a, 240, 240, 147456
def gen_empty(i):
    a=Asm(); a('s_endpgm'); return 'e%d'%i, a, 8, 8, 0
def build(ks, path):
    hdr=open('cdna_kernels/'+NAME+'.s.ref').read().split('\n')
    out=[l for l in hdr if l.startswith(';') and '@launch' not in l and 'Override' not in l and 'grid=ceil' not in l]
    for n,a,vg,ac,lds in ks: out.append(f'; @launch kernel={n}_kernel grid=(256,1,1) block=(256,1,1) lds={lds}')
    out.append('.amdgcn_target "amdgcn-amd-amdhsa--gfx950"\n.text')
    seen=set()
    for n,a,vg,ac,lds in ks:
        if n in seen: continue
        seen.add(n)
        out.append(f'.text\n.globl {n}_kernel\n.p2align 8\n.type {n}_kernel,@function\n{n}_kernel:')
        out+=['    '+l for l in a.fix()]
        out.append(kd(n+'_kernel',vg,ac))
    open(path,'w').write('\n'.join(out)+'\n')
if __name__=='__main__':
    ks=[gen_k1(),gen_k2(),gen_k3(),gen_k4()]
    build(ks,'cdna_kernels/'+NAME+'.s')
    build([gen_p12(),gen_k3(),gen_k4()],'v_p12.s')
    PREF=True
    build([gen_p12(),gen_k3(),gen_k4()],'v_p12pf.s')
    STAMPS=True
    build([gen_p12(4),gen_k3(),gen_k4()],'v_stamp4.s')
    build([gen_p12(16),gen_k3(),gen_k4()],'v_stamp5.s')
    build([gen_k1(),gen_k2(),gen_k3(),gen_k4()],'v_stamp.s')
    build([gen_k1(),gen_k2(),gen_k3(),gen_k3('g1b',4),gen_k4(),gen_k4('g2b',5)],'v_stamp2.s')
    build([gen_k1(),gen_k2(),gen_k3(),gen_k3('g1b',4,'nomem'),gen_k3('g1c',5,'nomfma'),gen_k4(),gen_k4('g2b',6,'nomem'),gen_k4('g2c',7,'nomfma')],'v_stamp3.s')
```

```python
import sys
from asmlib import *
NAME='sequential_preLN__spectral_fnet__geglu_ffn__prompt'
WS_Z=0; WS_HN=2<<20; WS_H=4<<20; WS_G=6<<20; WS_F=16<<20; WS_SIZE=268435456
F1=WS_F; F2=WS_F+4096; F3=WS_F+8192
STG=28928; UPO=14336+128; LX=115712; LY=144640; LR=161024; YS=2048
C1=-2.302208198; C2=C1*0.044715
dp='row_mask:0xf bank_mask:0xf'
class K(Asm):
    def __init__(s_,opt):
        super().__init__(); s_.q=[]; s_.opt=opt; s_.ns=0; s_.nl=0
    def vm(s_,text,tag=None): s_(text); s_.q.append(tag)
    def wait(s_,*tags,extra=''):
        idx=max([i for i,t in enumerate(s_.q) if t in tags],default=-1)
        if idx<0: return
        n=len(s_.q)-1-idx
        s_(f's_waitcnt vmcnt({min(n,63)})'+extra); s_.q=s_.q[idx+1:]
    def drain(s_): s_('s_waitcnt vmcnt(0)'); s_.q=[]
    def stamp(s_):
        if s_.opt.get('stamp'): s_(f's_memrealtime {s(64+2*s_.ns,2)}'); s_.ns+=1
        return s_
    def sw(s_):
        if s_.opt.get('stamp'): s_('s_waitcnt lgkmcnt(0)')
    def lab(s_,p): s_.nl+=1; return f'L_{p}{s_.nl}'
SW=16; VL=2; VC=3; VH=4; VT=5
def setflag(a,soff):
    a(f'v_mov_b32 v8, 1\nv_mov_b32 v9, 0\ns_mov_b64 exec, 1')
    a.vm(f'buffer_store_dword v8, v9, s[12:15], {s(soff)} offen sc1','flag')
    a('s_mov_b64 exec, -1')
def poll(a,vaddr,soff,wide,srd=12):
    L=a.lab('poll'); E=a.lab('pe')
    a(f's_mov_b32 s27, 0\n{L}:\ns_add_u32 s27, s27, 1\ns_cmp_gt_u32 s27, 0x80000\ns_cbranch_scc1 {E}')
    so=s(soff) if soff is not None else '0'
    if wide:
        a(f'buffer_load_dwordx4 v[8:11], {v(vaddr)}, {s(srd,4)}, {so} offen sc1\ns_waitcnt vmcnt(0)\nv_and_b32 v8, v8, v9\nv_and_b32 v10, v10, v11\nv_and_b32 v8, v8, v10')
    else: a(f'buffer_load_dword v8, {v(vaddr)}, {s(srd,4)}, {so} offen sc1\ns_waitcnt vmcnt(0)')
    a(f'v_cmp_eq_u32 vcc, 1, v8\ns_cmp_eq_u64 vcc, exec\ns_cbranch_scc0 {L}\n{E}:'); a.q=[]
def k1of(a,sd,sp): a(f's_sub_u32 {s(sd)}, 32, {s(sp)}\ns_cmp_eq_u32 {s(sp)}, 0\ns_cselect_b32 {s(sd)}, 16, {s(sd)}')

VD=244
SWO,SM0=48,49
SP1,SNS=50,51
SMT,SNT=52,53
SWD,SL2=54,55
VW0,VW1,VL16=251,252,253
def wstage(a,g):
    for i in range(7):
        a(f's_add_u32 m0, {s(SM0)}, {(g%5)*STG+i*1024}\ns_nop 0')
        a.vm(f'buffer_load_dwordx4 {v(VD+i)}, s[32:35], {s(SWO)} offen lds',('W',g))
    a(f's_add_u32 {s(SWO)}, {s(SWO)}, {64*3584}')
UNIT=[11,12,13,14,15,16,17,18,19,0,1,2,3,4,5,6,7,8,9,10]
def sx(ops):
    return ops
def wdstep(a,i):
    u=UNIT[i%20]
    a(f's_add_u32 m0, {s(SL2)}, {u*8192}\ns_nop 0'); a.vm(f'buffer_load_dwordx4 {v(VW0)}, s[40:43], {s(SWD)} offen lds',('D',i))
    a(f's_add_u32 m0, {s(SL2)}, {u*8192+1024}\ns_nop 0'); a.vm(f'buffer_load_dwordx4 {v(VW1)}, s[40:43], {s(SWD)} offen lds',('D',i))
    a(f's_add_u32 {s(SWD)}, {s(SWD)}, 16384')

def prologue(a):
    a('s_cmp_ge_u32 s2, 256\ns_cbranch_scc1 L_end'); a.stamp()
    a('s_load_dwordx2 s[8:9], s[0:1], 0\ns_load_dwordx4 s[28:31], s[0:1], 80\ns_load_dwordx4 s[32:35], s[0:1], 48\ns_load_dwordx4 s[40:43], s[0:1], 64')
    a(f'v_lshrrev_b32 v1, 6, v0\nv_and_b32 {v(VL)}, 63, v0\nv_readfirstlane_b32 {s(SW)}, v1\nv_and_b32 {v(VC)}, 15, {v(VL)}\nv_lshrrev_b32 {v(VH)}, 4, {v(VL)}\nv_lshlrev_b32 {v(VL16)}, 4, {v(VL)}')
def srds(a):
    a('s_waitcnt lgkmcnt(0)\ns_mov_b32 s10, 2097152\ns_mov_b32 s11, 0x20000')
def srds2(a):
    a(f's_mov_b32 s12, s30\ns_mov_b32 s13, s31\ns_mov_b32 s14, {WS_SIZE}\ns_mov_b32 s15, 0x20000\ns_mov_b32 s30, 256\ns_mov_b32 s31, 0x20000')
    a('s_mov_b32 s44, s42\ns_mov_b32 s45, s43\ns_mov_b32 s46, 2097152\ns_mov_b32 s47, 0x20000\ns_mov_b32 s42, 1835008\ns_mov_b32 s43, 0x20000')
    a('s_mov_b32 s36, s34\ns_mov_b32 s37, s35\ns_mov_b32 s34, 1835008\ns_mov_b32 s35, 0x20000\ns_mov_b32 s38, 1835008\ns_mov_b32 s39, 0x20000')
def g_setup(a):
    a(f's_and_b32 s3, s2, 3\ns_lshl_b32 s3, s3, 2\ns_bfe_u32 s4, s2, {hex(3|(2<<16))}\ns_add_u32 {s(SP1)}, s3, s4')
    a(f's_bfe_u32 s3, s2, {hex(2|(1<<16))}\ns_lshl_b32 s3, s3, 3\ns_lshr_b32 s4, s2, 5\ns_add_u32 {s(SNS)}, s3, s4')
    a(f's_and_b32 s3, {s(SW)}, 1\ns_mul_i32 s3, s3, 448\nv_add_u32 v5, s3, {v(VL)}\ns_mov_b32 s4, {(2**32+13)//14}')
    for i in range(7):
        a(f'v_mul_hi_u32 v6, v5, s4\nv_mul_u32_u24 v7, 14, v6\nv_sub_u32 v7, v5, v7\nv_mul_u32_u24 v6, 0xe00, v6\nv_lshl_add_u32 {v(VD+i)}, v7, 4, v6')
        if i<6: a('v_add_u32 v5, 64, v5')
    a(f's_mul_i32 {s(SWO)}, {s(SNS)}, 224')
    a(f's_and_b32 s3, {s(SW)}, 1\ns_mul_i32 s3, s3, 7168\ns_cmp_ge_u32 {s(SW)}, 2\ns_cselect_b32 s4, {UPO}, 0\ns_cselect_b32 s32, s36, s32\ns_cselect_b32 s33, s37, s33\ns_add_u32 {s(SM0)}, s3, s4')
    a(f's_and_b32 s3, s2, 7\ns_lshl_b32 s3, s3, 2\ns_bfe_u32 s4, s2, {hex(3|(2<<16))}\ns_add_u32 {s(SMT)}, s3, s4\ns_lshr_b32 {s(SNT)}, s2, 5')
    a(f's_mul_i32 s4, {s(SW)}, {28<<14}\ns_lshl_b32 s3, {s(SNT)}, 7\ns_add_u32 {s(SWD)}, s3, s4\ns_lshl_b32 {s(SL2)}, {s(SW)}, 11')
    a(f'v_lshrrev_b32 v5, 3, {v(VL)}\nv_bfe_u32 v6, {v(VL)}, 4, 1\nv_lshlrev_b32 v6, 2, v6\nv_and_b32 v7, 7, {v(VL)}\nv_xor_b32 v6, v6, v7\nv_lshlrev_b32 v6, 4, v6\nv_lshl_add_u32 {v(VW0)}, v5, 10, v6\nv_add_u32 {v(VW1)}, 0x2000, {v(VW0)}')

def p1(a):
    SQ,SS2,SWQ,SSG,ST=17,18,19,20,21
    a(f's_lshr_b32 s3, s2, 3\ns_and_b32 {s(SQ)}, s3, 3\ns_lshr_b32 s3, s3, 2\ns_lshl_b32 s3, s3, 3\ns_and_b32 s4, s2, 7\ns_add_u32 {s(SS2)}, s3, s4')
    a(f's_lshl_b32 s3, {s(SW)}, 3\ns_lshl_b32 s4, s3, 16\ns_lshl_b32 s5, {s(SS2)}, 10\ns_add_u32 s4, s4, s5\ns_lshl_b32 s5, s3, 10\ns_add_u32 s5, s5, {LX}')
    a(f's_and_b32 s6, s3, 15\ns_lshl_b32 s6, s6, 4\nv_xor_b32 v5, s6, {v(VL16)}')
    srds(a)
    for i in range(8):
        a(f'v_xor_b32 v6, {hex(i*16)}, v5\ns_mov_b32 m0, s5\ns_add_u32 s5, s5, 1024')
        a.vm(f'buffer_load_dwordx4 v6, s[8:11], s4 offen lds','x'); a(f's_add_u32 s4, s4, 65536')
    srds2(a)
    a(f's_or_b32 s3, s2, {s(SW)}\ns_cmp_lg_u32 s3, 0\ns_cbranch_scc1 L_noreset')
    a(f'v_mov_b32 v8, 0\nv_mov_b32 v9, 0\nv_mov_b32 v10, 0\nv_mov_b32 v11, 0\ns_mov_b32 s3, {WS_F}')
    for i in range(12):
        a(f'buffer_store_dwordx4 v[8:11], {v(VL16)}, s[12:15], s3 offen offset:{(i&3)*1024} sc1')
        if (i&3)==3: a('s_add_u32 s3, s3, 4096')
    a('s_waitcnt vmcnt(0)\nv_mov_b32 v5, 1\nv_mov_b32 v6, 0\nbuffer_store_dword v5, v6, s[28:31], 0 offen sc1\nL_noreset:')
    a('s_mul_i32 s3, s2, 7168\nv_lshlrev_b32 v7, 4, v0\nv_add_u32 v8, 4096, v7')
    for k in range(3):
        a.vm(f'buffer_load_dwordx4 {acc(8*k,4)}, v7, {s(32+4*k,4)}, s3 offen','pf'); a.vm(f'buffer_load_dwordx4 {acc(8*k+4,4)}, v8, {s(32+4*k,4)}, s3 offen','pf')
    if a.opt.get('wearly'):
        g_setup(a)
        for g in range(a.opt['wearly']): wstage(a,g)
    a(f's_lshl_b32 {s(SWQ)}, {s(SQ)}, 2\ns_add_u32 {s(SWQ)}, {s(SWQ)}, {s(SW)}')
    a(f's_lshl_b32 s3, {s(SWQ)}, 5\ns_cmp_lt_u32 {s(SQ)}, 2\ns_cselect_b32 s4, 1, -254\ns_cselect_b32 {s(SSG)}, -1.0, 1.0\ns_add_u32 s3, s3, s4')
    VE,VB=5,6
    a(f'v_lshl_add_u32 v7, {v(VC)}, 1, s3\nv_cvt_f32_u32 {v(VE)}, v7\nv_mul_f32 {v(VE)}, {f2u(1/512)}, {v(VE)}')
    a(f'v_lshlrev_b32 {v(VB)}, 3, {v(VH)}\nv_cvt_f32_u32 {v(VB)}, {v(VB)}\nv_mul_f32 {v(VB)}, {v(VE)}, {v(VB)}')
    a(f'v_bfe_i32 v14, v7, 1, 1\nv_and_b32 v14, 0x80008000, v14\nv_xor_b32 v15, 0x80008000, v14')
    TC,TS=16,48; TMP=8
    for st in range(4):
        for jp in range(4):
            for k in range(2):
                c=32*st+2*jp+k
                a(f'v_mov_b32 {v(TMP+k)}, {v(VB)}' if c==0 else f'v_fmamk_f32 {v(TMP+k)}, {v(VE)}, {f2u(float(c))}, {v(VB)}')
            a(f'v_cos_f32 {v(TMP+2)}, {v(TMP)}\nv_cos_f32 {v(TMP+3)}, {v(TMP+1)}\nv_sin_f32 {v(TMP+4)}, -{v(TMP)}\nv_sin_f32 {v(TMP+5)}, -{v(TMP+1)}')
            a(f'v_cvt_pk_bf16_f32 {v(TC+4*st+jp)}, {v(TMP+2)}, {v(TMP+3)}\nv_cvt_pk_bf16_f32 {v(TS+4*st+jp)}, {v(TMP+4)}, {v(TMP+5)}')
    a(f's_cmp_lt_u32 {s(SQ)}, 2\ns_cbranch_scc1 L_odd')
    for k in range(16): a(f'v_xor_b32 {v(TC+16+k)}, v14, {v(TC+k)}\nv_xor_b32 {v(TS+16+k)}, v14, {v(TS+k)}')
    a('s_branch L_oddend\nL_odd:')
    for k in range(16): a(f'v_xor_b32 {v(TC+16+k)}, v14, {v(TS+k)}\nv_xor_b32 {v(TS+16+k)}, v15, {v(TC+k)}')
    a('L_oddend:')
    AX=104
    for b in range(4):
        a(f'v_add_u32 v5, {4*b}, {v(VH)}\nv_xor_b32 v5, v5, {v(VC)}\nv_lshlrev_b32 v5, 4, v5\nv_lshl_add_u32 v5, {v(VC)}, 10, v5\nv_add_u32 {v(AX+b)}, {LX}, v5')
    AS=108
    a(f'v_lshrrev_b32 v5, 3, {v(VL)}\ns_lshl_b32 s3, {s(SW)}, 3\nv_add_u32 v5, s3, v5\nv_lshlrev_b32 v110, 2, v5\nv_add_u32 v110, {LR}, v110')
    a(f'v_and_b32 v6, 15, v5\nv_and_b32 v7, 7, {v(VL)}\nv_xor_b32 v6, v6, v7\nv_lshlrev_b32 v6, 4, v6\nv_lshl_add_u32 v6, v5, 10, v6\nv_add_u32 {v(AS)}, {LX}, v6\nv_xor_b32 {v(AS+1)}, 0x80, {v(AS)}')
    a(f'v_lshlrev_b32 v111, 4, {v(VH)}\nv_add_u32 v111, {LR}, v111\nv_mov_b32 v113, 0x3f803f80')
    MC,MS,MN=80,88,96
    for T in range(2):
        a(f'v_lshrrev_b32 v5, 1, {v(VC)}\nv_add_u32 v5, {8*T}, v5\nv_sub_u32 v6, 32, v5\nv_cmp_eq_u32 vcc, 0, v5\nv_cndmask_b32 v6, v6, 16, vcc')
        a(f'v_and_b32 v7, 1, {v(VC)}\nv_cmp_eq_u32 vcc, 1, v7\nv_cndmask_b32 v5, v5, v6, vcc\nv_cvt_f32_u32 v5, v5\nv_mul_f32 v5, {f2u(1/2048)}, v5')
        a(f'v_lshlrev_b32 v6, 8, {v(VH)}\nv_add_u32 v6, {s(SS2)}, v6\nv_cvt_f32_u32 v6, v6\nv_mul_f32 v6, v5, v6')
        for jp in range(4):
            for k in range(2):
                j=2*jp+k; c=64*(16*(j>>2)+(j&3))
                a(f'v_mov_b32 {v(TMP+k)}, v6' if c==0 else f'v_fmamk_f32 {v(TMP+k)}, v5, {f2u(float(c))}, v6')
            a(f'v_cos_f32 {v(TMP+2)}, {v(TMP)}\nv_cos_f32 {v(TMP+3)}, {v(TMP+1)}\nv_sin_f32 {v(TMP+4)}, {v(TMP)}\nv_sin_f32 {v(TMP+5)}, {v(TMP+1)}')
            a(f'v_cvt_pk_bf16_f32 {v(MC+4*T+jp)}, {v(TMP+2)}, {v(TMP+3)}\nv_cvt_pk_bf16_f32 {v(MS+4*T+jp)}, {v(TMP+4)}, {v(TMP+5)}\nv_xor_b32 {v(MN+4*T+jp)}, 0x80008000, {v(MS+4*T+jp)}')
    a(f'v_lshrrev_b32 v5, 1, {v(VC)}\nv_lshlrev_b32 v5, 17, v5\nv_and_b32 v6, 1, {v(VC)}\nv_lshl_add_u32 v5, v6, 6, v5\nv_lshl_add_u32 v112, {v(VH)}, 4, v5')
    a(f's_lshl_b32 s3, {s(SS2)}, 11\ns_lshl_b32 s4, {s(SWQ)}, 7\ns_add_u32 {s(ST)}, s3, s4\ns_add_u32 {s(ST+1)}, {s(ST)}, {8<<17}')
    a(f's_lshl_b32 s3, {s(SWQ)}, 8\ns_lshl_b32 s4, {s(SS2)}, 2\ns_add_u32 s3, s3, s4\ns_add_u32 s23, s3, {F1}')
    a.stamp(); a.wait('x'); a('s_barrier'); a.stamp().sw()
    XS=116; XF=148; ACC=196; NB=12; LA=8
    reads=[(ks,T) for ks in range(16) for T in range(2)]
    def rd(n):
        ks,T=reads[n]; a(f'ds_read_b128 {v(XF+4*(n%NB),4)}, {v(AX+(ks&3))} offset:{T*16384+(ks>>2)*256}')
    for n in range(4): rd(n)
    for i in range(8): a(f'ds_read_b128 {v(XS+4*i,4)}, {v(AS+(i&1))} offset:{(i>>1)*256}')
    order=[0,1,2,3]+['s']*8
    stats=[]
    for i in range(32):
        stats.append(f'v_dot2_f32_bf16 v{5+(i&1)}, {v(XS+i)}, v113, '+('0' if i<2 else f'v{5+(i&1)}'))
        stats.append(f'v_dot2_f32_bf16 v{7+(i&1)}, {v(XS+i)}, {v(XS+i)}, '+('0' if i<2 else f'v{7+(i&1)}'))
    stats+=[None,None,'v_add_f32 v5, v5, v6','v_add_f32 v7, v7, v8']
    for m in ('quad_perm:[1,0,3,2]','quad_perm:[2,3,0,1]','row_half_mirror'):
        stats+=[f'v_add_f32 v5, v5, v5 {m} {dp}', f'v_add_f32 v7, v7, v7 {m} {dp}']
    stats+=[f'v_mul_f32 v5, {f2u(1/512)}, v5', f'v_mov_b32 v6, {f2u(1e-5)}', f'v_fmac_f32 v6, {f2u(1/512)}, v7','v_fma_f32 v7, -v5, v5, v6','v_rsq_f32 v7, v7',None,'ds_write_b32 v110, v7']
    si=0; nxt=4
    for n in range(32):
        ks,T=reads[n]
        while nxt<32 and nxt<=n+LA and len(order)-order.index(n)<15: rd(nxt); order.append(nxt); nxt+=1
        a('s_waitcnt lgkmcnt(%d)'%(len(order)-1-order.index(n)))
        half=ks>>3; st=ks&7
        for c,TB in ((0,TC),(1,TS)):
            A=ACC+half*16+T*8+c*4
            a(f'v_mfma_f32_16x16x32_bf16 {v(A,4)}, {v(XF+4*(n%NB),4)}, {v(TB+4*st,4)}, '+('0' if st==0 else v(A,4)))
            if n>=4:
                for _ in range(2):
                    if si<len(stats):
                        if stats[si]: a(stats[si])
                        if stats[si] and stats[si].startswith('ds_'): order.append('w')
                        si+=1
    assert si==len(stats)
    a('s_waitcnt lgkmcnt(0)\ns_barrier')
    RR=XS
    a(f'ds_read_b128 {v(RR,4)}, v111\nds_read_b128 {v(RR+4,4)}, v111 offset:64\nv_mov_b32 v9, 0')
    a.vm('buffer_load_dword v12, v9, s[28:31], 0 offen sc1','rdy')
    for T in range(2):
        for c in range(2):
            for r in range(4):
                A=ACC+T*8+c*4+r; a(f'v_fma_f32 {v(A)}, {s(SSG)}, {v(A+16)}, {v(A)}')
    a('s_waitcnt lgkmcnt(0)')
    FR=XF
    for c in range(2):
        for T in range(2):
            A=ACC+T*8+c*4
            for r in range(4): a(f'v_mul_f32 {v(A+r)}, {v(RR+4*T+r)}, {v(A+r)}')
            for jp in range(2): a(f'v_cvt_pk_bf16_f32 {v(FR+4*c+2*T+jp)}, {v(A+2*jp)}, {v(A+2*jp+1)}')
    Z=ACC+16
    for T in range(2):
        a(f'v_mfma_f32_16x16x32_bf16 {v(Z+8*T,4)}, {v(FR,4)}, {v(MC+4*T,4)}, 0\nv_mfma_f32_16x16x32_bf16 {v(Z+8*T+4,4)}, {v(FR+4,4)}, {v(MC+4*T,4)}, 0')
        a(f'v_mfma_f32_16x16x32_bf16 {v(Z+8*T,4)}, {v(FR+4,4)}, {v(MS+4*T,4)}, {v(Z+8*T,4)}\nv_mfma_f32_16x16x32_bf16 {v(Z+8*T+4,4)}, {v(FR,4)}, {v(MN+4*T,4)}, {v(Z+8*T+4,4)}')
    for T in range(2):
        for k in range(4): a(f'v_cvt_pk_bf16_f32 {v(ACC+4*T+k)}, {v(Z+8*T+2*k)}, {v(Z+8*T+2*k+1)}')
        a.vm(f'buffer_store_dwordx4 {v(ACC+4*T,4)}, v112, s[12:15], {s(ST+T)} offen sc1','z')
    a.stamp()
    if not a.opt.get('wearly'): g_setup(a)
    a.drain()
    a('v_readfirstlane_b32 s3, v12\ns_cmp_eq_u32 s3, 1\ns_cbranch_scc1 L_rdyok\nv_mov_b32 v12, 0'); poll(a,12,None,False,28); a('L_rdyok:')
    setflag(a,23); a.stamp()

def p2(a):
    SP,SJ,SK1B=17,18,19
    w0=a.opt.get('wearly',0); w1=max(w0,a.opt.get('w1',2))
    for g in range(w0,w1): wstage(a,g)
    a(f's_and_b32 {s(SP)}, s2, 15\ns_lshr_b32 {s(SJ)}, s2, 4'); k1of(a,SK1B,SP)
    a(f's_cmp_ge_u32 {s(SW)}, 2\ns_cselect_b32 s6, {s(SK1B)}, {s(SP)}\ns_lshl_b32 s7, {s(SJ)}, 2\ns_and_b32 s20, {s(SW)}, 1\ns_lshl_b32 s20, s20, 1\ns_add_u32 s7, s7, s20\ns_lshl_b32 s7, s7, 5\ns_add_u32 s6, s6, s7\ns_lshl_b32 s21, s6, 10')
    VXO=12; XR=16
    a(f'v_lshrrev_b32 v6, 5, {v(VL)}\nv_lshlrev_b32 v6, 15, v6\nv_and_b32 v13, 31, {v(VL)}\nv_lshl_add_u32 {v(VXO)}, v13, 4, v6')
    a.vm(f'buffer_load_dwordx4 {v(XR,4)}, {v(VXO)}, s[8:11], s21 offen','x2'); a.vm(f'buffer_load_dwordx4 {v(XR+4,4)}, {v(VXO)}, s[8:11], s21 offen offset:512','x2')
    AM=24
    a(f'v_and_b32 v5, 3, {v(VC)}\ns_lshl_b32 s3, {s(SJ)}, 2\nv_add_u32 v5, s3, v5\nv_lshrrev_b32 v6, 2, {v(VC)}\nv_add_u32 v7, 62, v6\nv_sub_u32 v7, v7, v5\nv_cmp_eq_u32 vcc, 0, v6\nv_cndmask_b32 v5, v7, v5, vcc')
    a(f'v_cvt_f32_u32 v5, v5\nv_mul_f32 v5, {f2u(1/64)}, v5\nv_lshlrev_b32 v6, 2, {v(VH)}\nv_cvt_f32_u32 v6, v6\nv_mul_f32 v6, v5, v6')
    for st in range(4):
        for d in range(4):
            c=16*st+d
            a(f'v_mov_b32 v7, v6' if c==0 else f'v_fmamk_f32 v7, v5, {f2u(float(c))}, v6')
            a(f'v_cos_f32 v8, v7\nv_sin_f32 v9, v7\ns_nop 0\nv_cvt_pk_bf16_f32 {v(AM+4*st+d)}, v8, v9')
    a(f'v_lshlrev_b32 v14, 13, {v(VH)}\nv_lshl_add_u32 v14, {v(VC)}, 4, v14\nv_add_u32 v15, 0x1000, v14\ns_lshl_b32 s3, {s(SP)}, 17\ns_lshl_b32 s4, {s(SW)}, 9\ns_add_u32 s24, s3, s4')
    YA=40
    a(f's_lshl_b32 s3, {s(SW)}, 7\ns_cmp_lt_u32 {s(SW)}, 2\ns_cselect_b32 s4, 1, -254\ns_add_u32 s3, s3, s4')
    a(f'v_lshrrev_b32 v5, 3, {v(VC)}\nv_lshlrev_b32 v5, 5, v5\nv_and_b32 v6, 3, {v(VC)}\nv_lshl_add_u32 v5, v6, 3, v5\nv_add_u32 v5, s3, v5\nv_sub_u32 v6, 0x200, v5')
    a(f'v_cmp_eq_u32 vcc, 0, {v(VH)}\nv_cndmask_b32 v5, v6, v5, vcc\nv_lshlrev_b32 v5, 2, v5\nv_cndmask_b32 v6, -8, 8, vcc')
    a(f's_cmp_eq_u32 {s(SP)}, 0\ns_cselect_b32 s3, 0, 1\nv_mov_b32 v7, s3\nv_cndmask_b32 v7, v7, 0, vcc\nv_bfe_u32 v8, {v(VC)}, 2, 1\nv_xor_b32 v7, v7, v8\nv_lshl_add_u32 v5, v7, 13, v5\nv_add_u32 {v(YA)}, {LY}, v5')
    for i in range(1,4): a(f'v_add_u32 {v(YA+i)}, v6, {v(YA+i-1)}')
    a(f'v_lshlrev_b32 v6, 5, v6')
    for i in range(4): a(f'v_add_u32 {v(YA+4+i)}, v6, {v(YA+i)}')
    a(f'v_or_b32 v8, s3, v8\nv_sub_u32 v8, 2, v8\nv_cmp_eq_u32 s[58:59], v8, {v(VH)}\ns_or_b64 s[58:59], s[58:59], vcc')
    a(f'v_and_b32 v5, 7, {v(VL)}\nv_lshlrev_b32 v5, 11, v5\nv_add_u32 v5, {LY}, v5\nv_mov_b32 v6, 0\nds_write_b32 v5, v6')
    a(f's_lshl_b32 s3, {s(SW)}, 12\ns_add_u32 s3, s3, {LY}\nv_lshrrev_b32 v5, 5, {v(VL)}\nv_lshlrev_b32 v6, 11, v5\nv_lshl_add_u32 v6, v13, 5, v6\nv_add_u32 v48, s3, v6')
    a(f'v_lshrrev_b32 v6, 1, v13\nv_lshlrev_b32 v6, 10, v6\nv_and_b32 v7, 1, v13\nv_lshl_add_u32 v6, v7, 9, v6\nv_lshl_add_u32 v49, v5, 4, v6')
    a(f's_lshl_b32 s3, {s(SP)}, 2\ns_lshr_b32 s4, {s(SJ)}, 2\ns_add_u32 s3, s3, s4\ns_lshl_b32 s5, s3, 6\ns_lshl_b32 s3, s3, 15\ns_and_b32 s4, {s(SJ)}, 3\ns_lshl_b32 s6, s4, 4\ns_lshl_b32 s4, s4, 7\ns_add_u32 s3, s3, s4\ns_lshl_b32 s4, {s(SW)}, 5\ns_add_u32 s3, s3, s4\ns_add_u32 s22, s3, {WS_HN}\ns_add_u32 s23, s22, 16384\ns_add_u32 s25, s21, {WS_H}')
    a(f's_add_u32 s5, s5, s6\ns_lshl_b32 s4, {s(SW)}, 2\ns_add_u32 s5, s5, s4\ns_add_u32 s26, s5, {F2}')
    a(f's_mov_b32 s56, 0x05040100\ns_mov_b32 s57, 0x07060302\ns_lshl_b32 s3, {s(SW)}, 10\ns_add_u32 s20, s3, {F1}')
    a.stamp(); poll(a,VL16,20,True); a.stamp().sw()
    RAW=116; ACC=52; FB=84
    for st in range(4):
        for cg in range(2):
            for i in range(4):
                a.vm(f'buffer_load_dwordx4 {v(RAW+32*st+16*cg+4*i,4)}, {v(14+(i>>1))}, s[12:15], s24 offen offset:{(i&1)*2048+cg*256} sc1',('z',st,cg))
        if st<3: a('s_add_u32 s24, s24, 32768')
    for g in range(w1,5): wstage(a,g)
    for st in range(4):
        for cg in range(2):
            a.wait(('z',st,cg)); R=RAW+32*st+16*cg; F=FB+16*cg
            for i in range(4):
                for d in range(4): a(f'v_perm_b32 {v(F+4*i+d)}, {v(R+4*d+2+(i>>1))}, {v(R+4*d+(i>>1))}, {s(56+(i&1))}')
            for i in range(4):
                A=ACC+16*cg+4*i
                a(f'v_mfma_f32_16x16x32_bf16 {v(A,4)}, {v(AM+4*st,4)}, {v(F+4*i,4)}, '+('0' if st==0 else v(A,4)))
    a.stamp()
    X=100
    for k in range(8): a(f'v_lshlrev_b32 {v(X+2*k)}, 16, {v(XR+k)}\nv_and_b32 {v(X+2*k+1)}, 0xffff0000, {v(XR+k)}')
    a('s_mov_b64 exec, s[58:59]')
    for i in range(8):
        for r in range(4): a(f'ds_write_b32 {v(YA+i)}, {v(ACC+4*i+r)} offset:{r*YS}')
    a('s_mov_b64 exec, -1\ns_waitcnt lgkmcnt(0)\ns_barrier')
    Y=52
    for k in range(4): a(f'ds_read_b128 {v(Y+4*k,4)}, v48 offset:{(k>>1)*1024+(k&1)*16}')
    for k in range(16):
        if k%4==0: a(f's_waitcnt lgkmcnt({3-k//4})')
        a(f'v_add_f32 {v(Y+k)}, {v(Y+k)}, {v(X+k)}')
    for k in range(8): a(f'v_cvt_pk_bf16_f32 {v(XR+k)}, {v(Y+2*k)}, {v(Y+2*k+1)}')
    a('v_mov_b32 v8, 0x3f803f80')
    for k in range(8): a(f'v_dot2_f32_bf16 {v(5+(k&1))}, {v(XR+k)}, v8, '+('0' if k<2 else v(5+(k&1))))
    a.vm(f'buffer_store_dwordx4 {v(XR,4)}, {v(VXO)}, s[12:15], s25 offen sc1','h'); a.vm(f'buffer_store_dwordx4 {v(XR+4,4)}, {v(VXO)}, s[12:15], s25 offen offset:512 sc1','h')
    a('v_add_f32 v5, v5, v6')
    def red(r,t,fill):
        for m in ('quad_perm:[1,0,3,2]','quad_perm:[2,3,0,1]','row_half_mirror','row_mirror'):
            for _ in range(2):
                if fill: a(fill.pop(0))
            a(f'v_add_f32 {v(r)}, {v(r)}, {v(r)} {m} {dp}')
        a(f'v_mov_b32 {v(t)}, {v(r)}')
        for _ in range(2):
            if fill: a(fill.pop(0))
        a(f'v_permlane16_swap_b32 {v(r)}, {v(t)}\nv_add_f32 {v(r)}, {v(r)}, {v(t)}')
        while fill: a(fill.pop(0))
    fill=[]
    for k in range(8): fill+=[f'v_lshlrev_b32 {v(X+2*k)}, 16, {v(XR+k)}',f'v_and_b32 {v(X+2*k+1)}, 0xffff0000, {v(XR+k)}']
    red(5,6,fill)
    a(f'v_mul_f32 v6, {f2u(-1/512)}, v5\nv_mul_f32 v7, {f2u(-1/512)}, v5')
    for k in range(8): a(f'v_pk_add_f32 {v(X+2*k,2)}, {v(X+2*k,2)}, v[6:7]')
    a(f'v_pk_mul_f32 v[8:9], {v(X,2)}, {v(X,2)}\nv_pk_mul_f32 v[10:11], {v(X+2,2)}, {v(X+2,2)}')
    for k in range(2,8): a(f'v_pk_fma_f32 {v(8+2*(k&1),2)}, {v(X+2*k,2)}, {v(X+2*k,2)}, {v(8+2*(k&1),2)}')
    a('v_pk_add_f32 v[8:9], v[8:9], v[10:11]\nv_add_f32 v5, v8, v9')
    red(5,6,[])
    a(f'v_mov_b32 v6, {f2u(1e-5)}\nv_fmac_f32 v6, {f2u(1/512)}, v5\nv_rsq_f32 v6, v6\ns_nop 0\nv_mov_b32 v7, v6')
    for k in range(8): a(f'v_pk_mul_f32 {v(X+2*k,2)}, {v(X+2*k,2)}, v[6:7]')
    for k in range(8): a(f'v_cvt_pk_bf16_f32 {v(Y+k)}, {v(X+2*k)}, {v(X+2*k+1)}')
    a.vm(f'buffer_store_dwordx4 {v(Y,4)}, v49, s[12:15], s22 offen sc1','hn'); a.vm(f'buffer_store_dwordx4 {v(Y+4,4)}, v49, s[12:15], s23 offen sc1','hn')
    a.stamp()

def g1(a):
    SHO=17; VA=12; FR=24; ACC=80
    a(f's_lshl_b32 s3, {s(SP1)}, 2\ns_add_u32 s3, s3, {s(SW)}\ns_lshl_b32 {s(SHO)}, s3, 15\ns_add_u32 {s(SHO)}, {s(SHO)}, {WS_HN}\ns_lshl_b32 s5, s3, 6\ns_add_u32 s20, s5, {F2}')
    a(f's_lshl_b32 s4, {s(SNS)}, 2\ns_add_u32 s5, s5, s4\ns_add_u32 s21, s5, {F3}')
    a(f's_mul_i32 s23, s3, 112\ns_mul_i32 s4, {s(SNS)}, 7\ns_add_u32 s23, s23, s4\ns_lshl_b32 s23, s23, 10\ns_add_u32 s23, s23, {WS_G}\ns_add_u32 s24, s23, 4096')
    a(f'v_lshrrev_b32 v5, 5, {v(VL)}\nv_mul_u32_u24 v5, {8*224}, v5\nv_bfe_u32 v6, {v(VL)}, 2, 2\nv_mul_u32_u24 v6, 0xe0, v6\nv_add_u32 v5, v5, v6')
    a(f'v_bfe_u32 v6, {v(VL)}, 4, 1\nv_lshl_add_u32 v5, v6, 4, v5\nv_and_b32 v6, 1, {v(VL)}\nv_lshl_add_u32 v5, v6, 3, v5\nv_bfe_u32 v6, {v(VL)}, 1, 1\nv_mul_u32_u24 v6, {UPO}, v6\nv_add_u32 {v(VA)}, v5, v6')
    for i in range(1,5): a(f'v_add_u32 {v(VA+i)}, {STG}, {v(VA+i-1)}')
    a(f's_mov_b32 s60, {f2u(C2)}\ns_mov_b32 s61, {f2u(C2)}\nv_mov_b32 v18, {f2u(C1)}\nv_mov_b32 v19, {f2u(C1)}\nv_mov_b32 v20, 1.0\nv_mov_b32 v21, 1.0\nv_lshlrev_b32 v17, 2, {v(VC)}')
    a.drain(); setflag(a,26); a.stamp(); a('s_barrier')
    def reads(ks):
        g=ks>>2; l=ks&3
        return [f'ds_read_b64_tr_b16 {v(FR+28*(ks&1)+4*jt+2*rd,2)}, {v(VA+g%5)} offset:{l*16*224+rd*4*224+jt*32}' for jt in range(7) for rd in range(2)]
    for r in reads(0): a(r)
    poll(a,17,20,False); a.stamp().sw()
    for ks in range(32):
        a.vm(f'buffer_load_dwordx4 {acc(4*ks,4)}, {v(VL16)}, s[12:15], {s(SHO)} offen offset:{(ks&3)*1024} sc1',('hn',ks))
        if (ks&3)==3: a(f's_add_u32 {s(SHO)}, {s(SHO)}, 4096')
    RP=[4,4,4,2,0,0,0]
    wdb={15:range(0,3),19:range(3,9),23:range(9,12),27:range(12,16)}
    for ks in range(32):
        nxt=reads(ks+1) if ks<31 else []
        bar=(ks&3)==3
        g=(ks>>2)+1
        if bar:
            a('s_waitcnt lgkmcnt(0)'); a.wait(('W',g),('hn',ks)); a('s_barrier')
        else: a.wait(('hn',ks))
        bg=[]
        if bar and g+4<8: bg=[lambda gg=g+4: wstage(a,gg)]
        if ks in wdb: bg=[(lambda ii=i: wdstep(a,ii)) for i in wdb[ks]]
        issued=0
        for jt in range(7):
            A=ACC+16*jt
            if not bar: a(f's_waitcnt lgkmcnt({min(15,12-2*jt+issued)})')
            a(f'v_mfma_f32_32x32x16_bf16 {v(A,16)}, {v(FR+28*(ks&1)+4*jt,4)}, {acc(4*ks,4)}, '+('0' if ks==0 else v(A,16)))
            for r in nxt[issued:issued+RP[jt]]: a(r)
            issued+=len(nxt[issued:issued+RP[jt]])
            if jt>=3 and bg:
                bg.pop(0)()
                if jt>=5:
                    while len(bg)>6-jt: bg.pop(0)()
    a.stamp()
    T=FR
    for jt in range(7):
        A=ACC+16*jt
        P=[(A+8*(j>>1)+2*(j&1),A+8*(j>>1)+4+2*(j&1),T+2*j) for j in range(4)]
        for G,U,t in P: a(f'v_pk_mul_f32 {v(t,2)}, {v(G,2)}, {v(G,2)}')
        for G,U,t in P: a(f'v_pk_fma_f32 {v(t,2)}, {v(t,2)}, s[60:61], v[18:19]')
        for G,U,t in P: a(f'v_pk_mul_f32 {v(t,2)}, {v(t,2)}, {v(G,2)}')
        for G,U,t in P: a(f'v_exp_f32 {v(t)}, {v(t)}\nv_exp_f32 {v(t+1)}, {v(t+1)}\nv_pk_mul_f32 {v(G,2)}, {v(G,2)}, {v(U,2)}')
        for G,U,t in P: a(f'v_pk_add_f32 {v(t,2)}, {v(t,2)}, v[20:21]')
        for G,U,t in P: a(f'v_rcp_f32 {v(t)}, {v(t)}\nv_rcp_f32 {v(t+1)}, {v(t+1)}')
        O=T+8+4*(jt&1)
        for G,U,t in P: a(f'v_pk_mul_f32 {v(G,2)}, {v(G,2)}, {v(t,2)}')
        for j,(G,U,t) in enumerate(P): a(f'v_cvt_pk_bf16_f32 {v(O+j)}, {v(G)}, {v(G+1)}')
        a.vm(f'buffer_store_dwordx4 {v(O,4)}, {v(VL16)}, s[12:15], {s(23+(jt>>2))} offen offset:{(jt&3)*1024} sc1','g')
    a.stamp()

def g2(a):
    SG0,SG1=17,18; HR=12; FR=24; ACC=40; NS=28
    a(f's_mul_i32 s3, {s(SMT)}, 224\ns_mul_i32 s4, {s(SW)}, 28\ns_add_u32 s3, s3, s4\ns_lshl_b32 s3, s3, 10\ns_add_u32 {s(SG0)}, s3, {WS_G}\ns_add_u32 {s(SG1)}, {s(SG0)}, {112*1024}')
    a(f's_lshr_b32 s23, {s(SMT)}, 1'); k1of(a,24,23)
    a(f'v_lshrrev_b32 v6, 3, v0\ns_and_b32 s3, {s(SMT)}, 1\ns_lshl_b32 s3, s3, 6\nv_add_u32 v6, s3, v6')
    a(f'v_lshrrev_b32 v7, 3, v6\nv_lshlrev_b32 v7, 2, v7\nv_and_b32 v10, 3, v6\nv_add_u32 v7, v7, v10\nv_lshlrev_b32 v7, 5, v7')
    a(f'v_mov_b32 v10, s23\nv_mov_b32 v11, s24\nv_and_b32 v6, 4, v6\nv_cmp_eq_u32 vcc, 0, v6\nv_cndmask_b32 v10, v11, v10, vcc\nv_add_u32 v7, v7, v10\nv_lshlrev_b32 v7, 10, v7')
    a(f'v_and_b32 v6, 7, v0\nv_lshl_add_u32 v104, v6, 4, v7\nv_add_u32 v105, {16*32*1024}, v104\ns_lshl_b32 s25, {s(SNT)}, 7\ns_add_u32 s26, s25, {WS_H}')
    a(f'v_lshrrev_b32 v6, 5, {v(VL)}\nv_lshlrev_b32 v6, 9, v6\nv_bfe_u32 v7, {v(VL)}, 2, 2\nv_lshl_add_u32 v6, v7, 7, v6\nv_bfe_u32 v7, {v(VL)}, 3, 1\nv_lshl_add_u32 v6, v7, 6, v6')
    a(f'v_bfe_u32 v7, {v(VL)}, 4, 1\nv_lshl_add_u32 v6, v7, 5, v6\nv_and_b32 v7, 3, {v(VL)}\nv_lshl_add_u32 v6, v7, 3, v6\nv_add_u32 v106, {s(SL2)}, v6\nv_xor_b32 v107, 64, v106')
    for k in range(1,3): a(f'v_add_u32 {v(106+2*k)}, 0x10000, {v(104+2*k)}\nv_add_u32 {v(107+2*k)}, 0x10000, {v(105+2*k)}')
    a(f'v_bfe_u32 v6, {v(VL)}, 2, 1\nv_lshlrev_b32 v6, 6, v6\nv_and_b32 v7, 3, {v(VL)}\nv_lshl_add_u32 v112, v7, 2, v6\ns_lshl_b32 s3, {s(SMT)}, 7\ns_lshl_b32 s4, {s(SW)}, 4\ns_add_u32 s3, s3, s4\ns_add_u32 s20, s3, {F3}')
    a.drain(); setflag(a,21); a.stamp()
    for i in range(16,20): wdstep(a,i)
    def reads(i):
        u=UNIT[i%20]
        return [f'ds_read_b64_tr_b16 {v(FR+8*(i&1)+4*nT+2*rd,2)}, {v(106+2*(u>>3)+nT)} offset:{(u&7)*8192+rd*1024}' for nT in range(2) for rd in range(2)]
    for r in reads(0): a(r)
    poll(a,112,20,False); a.stamp().sw()
    for i in range(NS):
        a.vm(f'buffer_load_dwordx4 {acc(8*i,4)}, {v(VL16)}, s[12:15], {s(SG0)} offen offset:{(i&3)*1024} sc1',('g',i))
        a.vm(f'buffer_load_dwordx4 {acc(8*i+4,4)}, {v(VL16)}, s[12:15], {s(SG1)} offen offset:{(i&3)*1024} sc1',('g',i))
        if (i&3)==3: a(f's_add_u32 {s(SG0)}, {s(SG0)}, 4096\ns_add_u32 {s(SG1)}, {s(SG1)}, 4096')
    a.vm(f'buffer_load_dwordx4 {v(HR,4)}, v104, s[12:15], s26 offen sc1','h'); a.vm(f'buffer_load_dwordx4 {v(HR+4,4)}, v105, s[12:15], s26 offen sc1','h')
    for i in range(NS):
        if i+1<NS:
            a.wait(('g',i),('D',i+1))
            for r in reads(i+1): a(r)
            a('s_waitcnt lgkmcnt(4)')
        else: a.wait(('g',i),'h'); a('s_waitcnt lgkmcnt(0)')
        for T in range(2):
            for nT in range(2):
                A=ACC+16*(2*T+nT)
                a(f'v_mfma_f32_32x32x16_bf16 {v(A,16)}, {v(FR+8*(i&1)+4*nT,4)}, {acc(8*i+4*T,4)}, '+('0' if i==0 else v(A,16)))
            if T==0 and i<8: wdstep(a,i+20)
    a.stamp()
    RS=272
    a(f'v_and_b32 v6, 31, {v(VL)}\nv_mul_u32_u24 v6, {RS}, v6\nv_lshrrev_b32 v7, 5, {v(VL)}\nv_lshl_add_u32 v6, v7, 4, v6\ns_lshl_b32 s3, {s(SW)}, 15\nv_add_u32 v6, s3, v6')
    a(f'v_lshrrev_b32 v7, 3, v0\nv_mul_u32_u24 v7, {RS}, v7\nv_and_b32 v10, 7, v0\nv_lshl_add_u32 v7, v10, 5, v7\nv_add_u32 v10, 0x10000, v7\ns_barrier')
    for T in range(2):
        for nT in range(2):
            for g in range(4): a(f'ds_write_b128 v6, {v(ACC+16*(2*T+nT)+4*g,4)} offset:{T*32*RS+nT*128+g*32}')
    X=FR
    for ps in range(2):
        for k in range(4): a(f'v_lshlrev_b32 {v(X+8*ps+2*k)}, 16, {v(HR+4*ps+k)}\nv_and_b32 {v(X+8*ps+2*k+1)}, 0xffff0000, {v(HR+4*ps+k)}')
    a('s_waitcnt lgkmcnt(0)\ns_barrier')
    R=ACC
    for ps in range(2):
        for w in range(4):
            for k in range(2): a(f'ds_read_b128 {v(R+32*ps+8*w+4*k,4)}, {v(7 if w<2 else 10)} offset:{(w&1)*32768+ps*32*RS+k*16}')
    for ps in range(2):
        B=R+32*ps
        for w in range(4):
            a(f's_waitcnt lgkmcnt({14-8*ps-2*w})')
            for k in range(4): a(f'v_pk_add_f32 {v(X+8*ps+2*k,2)}, {v(X+8*ps+2*k,2)}, {v(B+8*w+2*k,2)}')
        for k in range(4): a(f'v_cvt_pk_bf16_f32 {v(HR+4*ps+k)}, {v(X+8*ps+2*k)}, {v(X+8*ps+2*k+1)}')
        a(f'buffer_store_dwordx4 {v(HR+4*ps,4)}, {v(104+ps)}, s[44:47], s25 offen')
    a.stamp()

def finish(a):
    m=a.opt.get('stamp')
    if m:
        a('s_waitcnt vmcnt(0)'); a.stamp(); a('s_waitcnt lgkmcnt(0)')
        a(f'v_mov_b32 v1, 0\nv_cmp_eq_u32 vcc, 0, v0\ns_and_saveexec_b64 s[4:5], vcc\ns_cbranch_execz L_end')
        if m=='ws':
            a(f's_lshl_b32 s3, s2, 7\ns_add_u32 s3, s3, {200<<20}')
            for k in range(a.ns): a(f'v_mov_b32 v2, {s(64+2*k)}\nv_mov_b32 v3, {s(65+2*k)}\nbuffer_store_dwordx2 v[2:3], v1, s[12:15], s3 offen offset:{8*k}\ns_nop 1')
        else:
            a(f's_cmp_lg_u32 s2, {m}\ns_cbranch_scc1 L_end')
            for k in range(1,a.ns): a(f's_sub_u32 s3, {s(64+2*k)}, s64\nv_mov_b32 v2, s3\nbuffer_store_dword v2, v1, s[28:31], 0 offen offset:{4*k}')
    a('L_end:\ns_endpgm')
def build(path,**opt):
    a=K(opt); prologue(a); p1(a); p2(a); g1(a); g2(a); finish(a)
    hdr=open('cdna_kernels/'+NAME+'.s.ref').read().split('\n')
    out=[l for l in hdr if l.startswith(';') and '@launch' not in l]
    n=NAME+'_kernel'
    out.append('; @launch grid=(256,1,1) block=(256,1,1) lds=163840')
    out.append(f'.amdgcn_target "amdgcn-amd-amdhsa--gfx950"\n.text\n.globl {n}\n.p2align 8\n.type {n},@function\n{n}:')
    out+=['    '+l for l in a.fix()]
    out.append(kd(n,512,256,100))
    open(path,'w').write('\n'.join(out)+'\n'); return a
if __name__=='__main__':
    build('v2.s'); a=build('v2_stamp.s',stamp='ws'); print('stamps',a.ns)
    build('v2_dbg.s',stamp=100)
```
